```python
import torch

def _softmax(x, axis=-1):
    return torch.softmax(x, dim=axis)
def _gelu(x):
    return torch.nn.functional.gelu(x, approximate="tanh")
def _silu(x):
    return torch.nn.functional.silu(x)
def _sigmoid(x):
    return torch.sigmoid(x)
def _layernorm(x, axis=-1, eps=1e-5):
    m = x.mean(dim=axis, keepdim=True)
    v = x.var(dim=axis, keepdim=True, unbiased=False)
    return (x - m) / torch.sqrt(v + eps)
def _scatter_add(tgt, idx, src, axis=0):
    return tgt.clone().index_add_(axis, idx, src)
def _segment_sum(src, seg, n):
    out = torch.zeros((n,) + src.shape[1:], dtype=src.dtype)
    return out.index_add_(0, seg, src)
def _pad(x, pw):
    flat = tuple(v for pair in reversed(pw) for v in pair)
    return torch.nn.functional.pad(x, flat)

kernel_name = 'parallel_sum__linear_kernel_hedgehog__glu_gated_swiglu__prompt'

def setup_inputs():

    _w = (lambda a: (lambda t: t.to(torch.bfloat16) if t.is_floating_point() else t)(torch.as_tensor(a)))
    def _A_setup():
        B, S, D, H = 1, 2048, 640, 32
        Dh = D // H
        return {
            "x": _w((lambda *s: torch.randn(*s, dtype=torch.bfloat16) * 0.05)(B, S, D)),
            "wqkv": _w((lambda *s: torch.randn(*s, dtype=torch.bfloat16) * 0.2)(D, 3 * D)),
            "w_phi": _w((lambda *s: torch.randn(*s, dtype=torch.bfloat16) * 0.2)(H, Dh, Dh) * (Dh ** -0.5)),
            "wo": _w((lambda *s: torch.randn(*s, dtype=torch.bfloat16) * 0.05)(D, D)),
        }
    _A_in = _A_setup()

    def _B_setup():
        B, S, D, F = 1, 2048, 640, 1536
        return {
            "x": _w((lambda *s: torch.randn(*s, dtype=torch.bfloat16) * 0.05)(B, S, D)),
            "w1": _w((lambda *s: torch.randn(*s, dtype=torch.bfloat16) * 0.4)(D, F) * (2.0 / D) ** 0.5),
            "w3": _w((lambda *s: torch.randn(*s, dtype=torch.bfloat16) * 0.4)(D, F) * (2.0 / D) ** 0.5),
            "w2": _w((lambda *s: torch.randn(*s, dtype=torch.bfloat16) * 0.4)(F, D) * (2.0 / F) ** 0.5),
        }
    _B_in = _B_setup()

    return {
        "A_x": _A_in["x"],
        "A_wqkv": _A_in["wqkv"],
        "A_w_phi": _A_in["w_phi"],
        "A_wo": _A_in["wo"],
        "B_x": _B_in["x"],
        "B_w1": _B_in["w1"],
        "B_w3": _B_in["w3"],
        "B_w2": _B_in["w2"],
    }

def reference(A_x, A_wqkv, A_w_phi, A_wo, B_x, B_w1, B_w3, B_w2):
    def _A_ref(x, wqkv, w_phi, wo):
        B, S, D = x.shape
        H = 32; Dh = D // H
        qkv = (lambda x, *d: x.permute(*d))((x @ wqkv).reshape(B, S, 3, H, Dh), 2, 0, 3, 1, 4)
        q, k, v = qkv[0], qkv[1], qkv[2]
        pq = torch.einsum("bhsd,hdf->bhsf", q, w_phi)
        pk = torch.einsum("bhsd,hdf->bhsf", k, w_phi)
        phi_q = torch.concatenate([_softmax(pq, axis=-1), _softmax(-pq, axis=-1)], axis=-1)
        phi_k = torch.concatenate([_softmax(pk, axis=-1), _softmax(-pk, axis=-1)], axis=-1)
        kv = torch.einsum("bhsf,bhsd->bhfd", phi_k, v)
        z  = torch.einsum("bhsf->bhf", phi_k)
        num = torch.einsum("bhqf,bhfd->bhqd", phi_q, kv)
        den = torch.einsum("bhqf,bhf->bhq", phi_q, z)[..., None] + 1e-6
        o = num / den
        return (lambda x, *d: x.permute(*d))(o, 0, 2, 1, 3).reshape(B, S, D) @ wo

    def _B_ref(x, w1, w3, w2):
        gate = torch.einsum("bsd,df->bsf", x, w1)
        up = torch.einsum("bsd,df->bsf", x, w3)
        h = _silu(gate) * up
        out = torch.einsum("bsf,fd->bsd", h, w2)
        return out

    x = A_x
    xn = _layernorm(x, axis=-1)
    return x + _A_ref(xn, A_wqkv, A_w_phi, A_wo) + _B_ref(xn, B_w1, B_w3, B_w2)
```

```python
import re
from collections import deque

REG_RE = re.compile(r'(?<![\w.])([vas])(\d+)(?![\w\[])|(?<![\w.])([vas])\[(\d+):(\d+)\]|(?<![\w.])(vcc|exec|m0|scc)(?![\w])')

def regs_of(s):
    out = []
    for m in REG_RE.finditer(s):
        if m.group(1):
            out.append(m.group(1) + m.group(2))
        elif m.group(3):
            out += [m.group(3) + str(i) for i in range(int(m.group(4)), int(m.group(5)) + 1)]
        else:
            out.append(m.group(6))
    return out

def split_ops(s):
    ops = []; depth = 0; cur = ''
    for ch in s:
        if ch in '[(': depth += 1
        if ch in '])': depth -= 1
        if ch == ',' and depth == 0:
            ops.append(cur.strip()); cur = ''
        else:
            cur += ch
    if cur.strip(): ops.append(cur.strip())
    return ops

TRANS = ('v_exp_f32', 'v_log_f32', 'v_rcp_f32', 'v_rsq_f32', 'v_sqrt_f32', 'v_sin_f32', 'v_cos_f32', 'v_rcp_iflag_f32')
SCC_W = ('s_add_u32','s_addc_u32','s_sub_u32','s_subb_u32','s_add_i32','s_sub_i32','s_lshl_b32','s_lshr_b32','s_lshl_b64','s_lshr_b64','s_ashr_i32',
         's_and_b32','s_and_b64','s_or_b32','s_or_b64','s_xor_b32','s_xor_b64','s_andn2_b64','s_andn2_b32','s_not_b32','s_min_u32','s_max_u32','s_addk_i32',
         's_and_saveexec_b64','s_or_saveexec_b64','s_bfe_u32','s_lshl1_add_u32','s_lshl2_add_u32','s_lshl3_add_u32','s_lshl4_add_u32')

class I:
    __slots__ = ('text','op','kind','r','w','tok','waits','cost','mf','note','srcA','srcC','dst','wide','lat')
    def __init__(self, text, tok=None, waits=None, lat=None):
        self.text = text.strip(); self.tok = tok; self.waits = waits or []; self.note = ''
        t = self.text
        m = re.match(r'(\S+)\s*(.*)', t)
        op = m.group(1); rest = m.group(2)
        self.op = op
        for sfx in ('_e32','_e64','_dpp'):
            if op.endswith(sfx): op = op[:-len(sfx)]
        ops = split_ops(rest)
        r = []; w = []; kind = None; self.mf = 0; self.srcA = []; self.srcC = []; self.dst = []; self.wide = False
        R = lambda k: regs_of(ops[k]) if k < len(ops) else []
        allr = lambda k: [x for o in ops[k:] for x in regs_of(o)]
        if t.endswith(':'):
            kind = 'label'
        elif op.startswith('.') or op.startswith(';'):
            kind = 'dir'
        elif op.startswith('v_mfma'):
            kind = 'mfma'; self.mf = 8 if '32x32x16' in op else 4
            assert '32x32x16' in op or '16x16x32' in op
            w = R(0); self.srcA = R(1) + R(2); self.srcC = R(3); r = self.srcA + self.srcC + ['exec']
        elif op.startswith('v_cmp'):
            kind = 'valu'; w = R(0); r = allr(1) + ['exec']
        elif op in ('v_readfirstlane_b32','v_readlane_b32'):
            kind = 'valu'; w = R(0); r = allr(1) + ['exec']
        elif op.startswith('v_permlane') and 'swap' in op:
            kind = 'valu'; w = R(0) + R(1); r = R(0) + R(1) + ['exec']
        elif op.startswith('v_'):
            kind = 'trans' if op in TRANS else 'valu'
            w = R(0); r = allr(1) + ['exec']
            if op in ('v_fmac_f32','v_dot2c_f32_bf16','v_writelane_b32','v_pk_fmac_f16') or 'row_' in t or 'quad_perm' in t:
                r += R(0)
            if op in ('v_add_co_u32','v_sub_co_u32','v_addc_co_u32','v_subb_co_u32'):
                w += R(1); r = allr(2) + ['exec']
            if op == 'v_nop': kind = 'nop'
        elif op.startswith('ds_read') or op.startswith('ds_bpermute') or op.startswith('ds_swizzle'):
            kind = 'dsr'; w = R(0); r = allr(1) + ['exec']
        elif op.startswith('ds_write'):
            kind = 'dsw'; r = allr(0) + ['exec']
            if 'addtid' in op: r.append('m0')
        elif op.startswith('buffer_load') or op.startswith('global_load'):
            if re.search(r'\blds\b', rest) or '_lds_' in op:
                kind = 'dma'; r = allr(0) + ['m0','exec']
            else:
                kind = 'vld'; w = R(0); r = allr(1) + ['exec']
        elif op.startswith('buffer_store') or op.startswith('global_store') or op.startswith('buffer_atomic') or op.startswith('global_atomic'):
            kind = 'vst'; r = allr(0) + ['exec']
            self.wide = ('x3' in op or 'x4' in op)
            self.dst = R(0) if op.startswith('buffer') else R(1)
        elif op in ('buffer_wbl2','buffer_inv'):
            kind = 'vst'
        elif op.startswith('s_load') or op.startswith('s_buffer_load') or op in ('s_memtime','s_memrealtime'):
            kind = 'smem'; w = R(0); r = allr(1)
        elif op == 's_waitcnt': kind = 'wait'
        elif op == 's_barrier': kind = 'barrier'
        elif op == 's_nop': kind = 'nop'
        elif op in ('s_endpgm','s_branch','s_setprio','s_sleep','s_setpc_b64'):
            kind = 'ctl'; r = allr(0)
        elif op.startswith('s_cbranch'):
            kind = 'ctl'; r = ['scc'] if 'scc' in op else (['vcc'] if 'vcc' in op else ['exec'])
        elif op.startswith('s_cmp') or op.startswith('s_bitcmp'):
            kind = 'salu'; r = allr(0); w = ['scc']
        elif op.startswith('s_'):
            kind = 'salu'; w = R(0); r = allr(1)
            if op in SCC_W: w.append('scc')
            if op in ('s_addc_u32','s_subb_u32','s_cselect_b32','s_cselect_b64','s_cmov_b32'): r.append('scc')
            if 'saveexec' in op: w.append('exec'); r.append('exec')
            if op in ('s_addk_i32','s_mulk_i32','s_cmov_b32'): r += R(0)
        else:
            raise ValueError('unknown instr: ' + t)
        self.kind = kind; self.r = set(r); self.w = set(w)
        self.cost = {'trans': 2, 'valu': 1, 'dsr': 1, 'dsw': 1, 'vld': 1, 'vst': 1, 'dma': 1, 'mfma': 0}.get(kind, 0)
        self.lat = lat
    def states(self):
        if self.kind in ('label','dir'): return 0
        if self.op == 's_nop': return int(self.text.split()[1], 0) + 1
        return 1
    def __repr__(self): return self.text

def is_valu(i): return i.kind in ('valu','trans')
def vregs(s): return {x for x in s if x[0] in 'va' and x not in ('vcc',)}
def sregs(s): return {x for x in s if (x[0] == 's' and x != 'scc') or x == 'vcc'}

def needed_states(hist, n):
    need = 0; dist = 0
    nv_r = vregs(n.r); nv_w = vregs(n.w); ns_r = sregs(n.r)
    for p in reversed(hist):
        if dist >= 20: break
        req = 0
        if p.kind == 'mfma':
            D = p.w; big = p.mf == 8
            if n.kind == 'mfma':
                if D & set(n.srcA): req = max(req, 12 if big else 8)
                c = set(n.srcC)
                if D & c:
                    if not (D == c and p.mf == n.mf): req = max(req, 10 if big else 6)
                elif D & n.w: req = max(req, 10 if big else 6)
            elif is_valu(n) or n.kind in ('dsr','dsw','vld','vst','dma'):
                if D & (nv_r | nv_w): req = max(req, 12 if big else 8)
            if is_valu(n) and (set(p.srcC) & nv_w): req = max(req, 7 if big else 3)
            if n.kind in ('dsr','vld') and (set(p.srcC) & nv_w): req = max(req, 7 if big else 3)
        elif is_valu(p):
            pv = vregs(p.w); ps = sregs(p.w)
            if n.kind == 'mfma' and (pv & nv_r): req = max(req, 2)
            if n.kind == 'mfma' and 'exec' in p.w: req = max(req, 4)
            if is_valu(n):
                if p.kind == 'trans' and n.kind != 'trans' and (pv & (nv_r|nv_w)): req = max(req, 1)
                if p.kind == 'trans' and n.kind == 'trans' and (pv & nv_r): req = max(req, 1)
                if n.op.startswith('v_permlane') and (pv & nv_r): req = max(req, 2)
                if ('row_' in n.text or 'quad_perm' in n.text) and (pv & nv_r): req = max(req, 2)
                if n.op.startswith('v_readfirstlane') or n.op.startswith('v_readlane'):
                    if pv & nv_r: req = max(req, 1)
                    if ps & ns_r: req = max(req, 4)
                if ps & ns_r: req = max(req, 2)
            if p.kind == 'trans' and n.kind in ('dsw','vst','dsr','vld','dma') and (pv & nv_r): req = max(req, 1)
            if n.kind in ('vld','vst','dma') and (ps & ns_r): req = max(req, 5)
            if n.kind in ('salu','ctl') and (ps & (ns_r | set(n.r))): req = max(req, 1)
        elif p.kind == 'salu':
            if 'm0' in p.w and (n.kind == 'dma' or 'addtid' in n.op): req = max(req, 1)
        elif p.kind == 'vst' and p.wide:
            if set(p.dst) & nv_w: req = max(req, 2 if is_valu(n) else 1)
        need = max(need, req - dist)
        dist += p.states()
    return need

class Prog:
    def __init__(self):
        self.out = []
        self.vm = deque()
        self.lg = deque()
        self.smem = set()
        self.nsm = 0
        self.auto = True
        self.stats = {'nop': 0}
    def raw(self, text):
        self.out.append(I(text))
    def _wait(self, vm=None, lg=None):
        parts = []
        if vm is not None:
            vm = min(vm, 63)
            if vm < len(self.vm):
                parts.append(f'vmcnt({vm})')
                while len(self.vm) > vm: self.vm.popleft()
        if lg is not None:
            if self.nsm: lg = 0
            lg = min(lg, 15)
            if lg < len(self.lg) or (lg == 0 and self.nsm):
                parts.append(f'lgkmcnt({lg})')
                while len(self.lg) > lg: self.lg.popleft()
                if lg == 0: self.smem = set(); self.nsm = 0
        if parts:
            self.out.append(I('s_waitcnt ' + ' '.join(parts)))
    def pending(self, n):
        touch = n.r | n.w
        vm = None; lg = None
        for idx, (dst, tok) in enumerate(self.vm):
            if (dst & touch) or (tok is not None and tok in n.waits): vm = len(self.vm) - idx - 1
        for idx, (dst, tok) in enumerate(self.lg):
            if (dst & touch) or (tok is not None and tok in n.waits): lg = len(self.lg) - idx - 1
        if self.smem & touch: lg = 0
        return vm, lg
    def emit(self, x, tok=None, waits=None):
        if isinstance(x, str):
            lines = [l for l in x.strip().split('\n') if l.strip()]
            if len(lines) > 1:
                assert tok is None and waits is None
                for l in lines: self.emit(l)
                return
            x = I(lines[0], tok, waits)
        n = x
        if n.kind == 'wait':
            m = re.search(r'vmcnt\((\d+)\)', n.text)
            if m:
                while len(self.vm) > int(m.group(1)): self.vm.popleft()
            m = re.search(r'lgkmcnt\((\d+)\)', n.text)
            if m:
                k = int(m.group(1))
                while len(self.lg) > k: self.lg.popleft()
                if k == 0: self.smem = set(); self.nsm = 0
            self.out.append(n); return
        vm, lg = self.pending(n)
        self._wait(vm, lg)
        if n.kind in ('vld','vst','dma') and len(self.vm) >= 63:
            self._wait(vm=62)
        k = needed_states(self.out[-24:], n)
        while k > 0:
            c = min(k, 16); self.out.append(I(f's_nop {c-1}')); self.stats['nop'] += c; k -= c
        self.out.append(n)
        if n.kind == 'vld': self.vm.append((set(n.w), n.tok))
        elif n.kind in ('vst','dma'): self.vm.append((set(), n.tok))
        elif n.kind == 'dsr': self.lg.append((set(n.w), n.tok))
        elif n.kind == 'dsw': self.lg.append((set(), n.tok))
        elif n.kind == 'smem': self.smem |= n.w; self.nsm += 1
    def wait_tok(self, *toks):
        vm = None; lg = None
        for idx, (dst, tok) in enumerate(self.vm):
            if tok in toks: vm = len(self.vm) - idx - 1
        for idx, (dst, tok) in enumerate(self.lg):
            if tok in toks: lg = len(self.lg) - idx - 1
        self._wait(vm, lg)
    def wait_all(self, vm=True, lg=True):
        self._wait(0 if vm else None, 0 if lg else None)
    def ready(self, n, slack=0):
        return needed_states(self.out[-24:], n) <= slack
    def text(self):
        L = []
        for i in self.out:
            L.append(i.text if i.kind in ('label','dir') else '    ' + i.text)
        return '\n'.join(L) + '\n'

class Filler:
    def __init__(self): self.q = deque()
    def add(self, text, tok=None, waits=None):
        for l in text.strip().split('\n'):
            if l.strip(): self.q.append(I(l, tok, waits))
    def act(self, fn): self.q.append(fn)
    def delay(self, n): self.q.append(['delay', n])
    def __len__(self): return len(self.q)
    def cost(self): return sum(x.cost for x in self.q if isinstance(x, I))
    def run(self, prog, budget):
        while self.q and budget > 0:
            x = self.q[0]
            if isinstance(x, list):
                if x[1] > 0:
                    x[1] -= 1; return
                self.q.popleft(); continue
            if callable(x):
                self.q.popleft(); x(prog); continue
            if x.kind == 'mfma':
                if not prog.ready(x): return
                self.q.popleft(); prog.emit(x); budget = getattr(self, 'gap', 4); continue
            if x.cost > budget and budget < 2 and x.cost == 2: return
            if not prog.ready(x): return
            self.q.popleft(); prog.emit(x); budget -= x.cost
    def drain(self, prog):
        while self.q:
            x = self.q.popleft()
            if isinstance(x, list): continue
            if callable(x): x(prog)
            else: prog.emit(x)
```

```python
import sys
from asmdsl import *

NAME = "parallel_sum__linear_kernel_hedgehog__glu_gated_swiglu__prompt"
XF   = 0x0
B1F  = 0x300000
WPF  = 0xA00000
B2F  = 0xB00000
AF   = 0x1000000
KVP  = 0x1900000
FLG  = 0x1B00000
WS_N = 0x2000000
BIG  = 0x40000000
AFRT = 68 * 1024
KVS  = 6784
LOG2E = 0x3fb8aa3b
NLOG2E = 0xbfb8aa3b

def srd(p, d, base, nbytes):
    p.emit(f"s_mov_b32 s{d}, s{base}\ns_and_b32 s{d+1}, s{base+1}, 0xffff\ns_mov_b32 s{d+2}, {nbytes}\ns_mov_b32 s{d+3}, 0x20000")

def divmagic(n, maxv):
    for sh in (16, 18, 20):
        m = (1 << sh) // n + 1
        if all((v * m) >> sh == v // n for v in range(maxv + 1)) and maxv * m < (1 << 32) and m < (1<<24): return m, sh
    raise ValueError

def vdiv(p, dst, src, n, maxv):
    m, sh = divmagic(n, maxv)
    p.emit(f"v_mul_u32_u24 v{dst}, {m}, v{src}\nv_lshrrev_b32 v{dst}, {sh}, v{dst}")

def header(p, name):
    p.raw(f".globl {name}"); p.raw(".p2align 8"); p.raw(f".type {name},@function"); p.raw(f"{name}:")

def kd(name, vgpr, accum):
    return f""".amdhsa_kernel {name}
  .amdhsa_next_free_vgpr {vgpr}
  .amdhsa_next_free_sgpr 102
  .amdhsa_accum_offset {accum}
  .amdhsa_group_segment_fixed_size 0
  .amdhsa_kernarg_size 88
  .amdhsa_user_sgpr_count 2
  .amdhsa_user_sgpr_kernarg_segment_ptr 1
  .amdhsa_system_sgpr_workgroup_id_x 1
  .amdhsa_float_denorm_mode_32 3
.end_amdhsa_kernel
"""

def ids(p):
    p.emit("""s_and_b32 s56, s2, 7
s_lshr_b32 s57, s2, 3
s_and_b32 s58, s56, 1
s_lshr_b32 s59, s56, 1
s_lshr_b32 s65, s57, 2
s_and_b32 s66, s57, 3
s_lshl_b32 s60, s58, 3
s_add_u32 s60, s60, s65
s_lshl_b32 s61, s59, 2
s_add_u32 s61, s61, s66
s_lshl_b32 s62, s59, 3
s_add_u32 s62, s62, s65
s_lshl_b32 s63, s58, 2
s_add_u32 s63, s63, s66
v_lshrrev_b32 v1, 6, v0
v_readfirstlane_b32 s64, v1
v_and_b32 v2, 63, v0""")

def gen_k0():
    p = Prog(); name = "prep_kernel"
    header(p, name)
    LQ, L1, L3, LB = 0, 12288, 20480, 28672
    p.emit("s_cmp_ge_u32 s2, 256\ns_cbranch_scc1 K0_end")
    p.emit("s_load_dwordx8 s[4:11], s[0:1], 0\ns_load_dwordx4 s[12:15], s[0:1], 40\ns_load_dwordx2 s[16:17], s[0:1], 56\ns_load_dwordx2 s[20:21], s[0:1], 80")
    ids(p)
    srd(p, 24, 4, 2048*1280); srd(p, 28, 6, 640*3840); srd(p, 32, 8, 25600)
    srd(p, 36, 12, 640*3072); srd(p, 40, 14, 640*3072); srd(p, 48, 20, WS_N)
    p.emit("s_mul_i32 s70, s60, 40*3840\ns_mul_i32 s71, s61, 80\ns_add_u32 s70, s70, s71")
    p.emit("s_mul_i32 s72, s60, 40*3072\ns_mul_i32 s71, s61, 192\ns_add_u32 s72, s72, s71")
    p.emit("s_lshl_b32 s73, s64, 10")
    for mm in range(3):
        p.emit(f"v_add_u32 v3, {256*mm}, v0")
        vdiv(p, 4, 3, 15, 767)
        p.emit("v_mul_u32_u24 v5, 15, v4\nv_sub_u32 v5, v3, v5")
        vdiv(p, 6, 5, 5, 14)
        p.emit("v_mul_u32_u24 v7, 5, v6\nv_sub_u32 v7, v5, v7")
        p.emit("v_mul_u32_u24 v4, 3840, v4\nv_mul_u32_u24 v6, 1280, v6\nv_lshlrev_b32 v7, 4, v7\nv_add3_u32 v4, v4, v6, v7")
        p.emit(f"v_cmp_gt_u32 vcc, 600, v3\nv_mov_b32 v5, {BIG}\nv_cndmask_b32 v{8+mm}, v5, v4, vcc")
    for mm in range(2):
        p.emit(f"v_add_u32 v3, {256*mm}, v0")
        vdiv(p, 4, 3, 12, 511)
        p.emit("v_mul_u32_u24 v5, 12, v4\nv_sub_u32 v5, v3, v5")
        p.emit("v_mul_u32_u24 v4, 3072, v4\nv_lshl_add_u32 v4, v5, 4, v4")
        p.emit(f"v_cmp_gt_u32 vcc, 480, v3\nv_mov_b32 v5, {BIG}\nv_cndmask_b32 v{11+mm}, v5, v4, vcc")
    for mm in range(3):
        p.emit(f"s_add_u32 m0, s73, {LQ + mm*4096}\nbuffer_load_dwordx4 v{8+mm}, s[28:31], s70 offen lds")
    for mm in range(2):
        p.emit(f"s_add_u32 m0, s73, {L1 + mm*4096}\nbuffer_load_dwordx4 v{11+mm}, s[36:39], s72 offen lds")
        p.emit(f"s_add_u32 m0, s73, {L3 + mm*4096}\nbuffer_load_dwordx4 v{11+mm}, s[40:43], s72 offen lds")
    p.emit("s_lshl_b32 s74, s62, 1\ns_add_u32 s74, s74, s64\ns_add_u32 s75, s62, 64\ns_cmp_lt_u32 s64, 2\ns_cselect_b32 s74, s74, s75")
    p.emit("s_cmp_eq_u32 s64, 3\ns_cselect_b32 s74, 100, s74")
    p.emit("s_cmp_ge_u32 s74, 68\ns_cbranch_scc1 K0_noB2a")
    p.emit("s_cmp_lt_u32 s74, 48\ns_cselect_b32 s44, s16, s10\ns_cselect_b32 s45, s17, s11\ns_mov_b32 s46, 640*1280\ns_cselect_b32 s46, 1536*1280, s46\ns_and_b32 s45, s45, 0xffff\ns_mov_b32 s47, 0x20000")
    p.emit(f"s_mul_i32 s76, s64, 5120\ns_add_u32 s76, s76, {LB}")
    p.emit("s_lshr_b32 s77, s74, 4\ns_and_b32 s78, s74, 15\ns_mul_i32 s78, s78, 96\ns_lshl_b32 s77, s77, 5\ns_add_u32 s77, s77, s78")
    p.emit("s_sub_u32 s78, s74, 48\ns_lshl_b32 s78, s78, 2")
    p.emit("s_cmp_lt_u32 s74, 48\ns_cselect_b64 s[80:81], -1, 0")
    p.emit("s_mul_i32 s79, s63, 160")
    for mm in range(5):
        p.emit(f"v_add_u32 v3, {64*mm}, v2")
        vdiv(p, 4, 3, 10, 319)
        p.emit("v_mul_u32_u24 v5, 10, v4\nv_sub_u32 v5, v3, v5")
        p.emit("v_lshrrev_b32 v6, 3, v4\nv_and_b32 v7, 7, v4")
        p.emit("""v_and_b32 v13, 1, v6
v_lshlrev_b32 v13, 4, v13
v_lshrrev_b32 v14, 2, v7
v_lshl_add_u32 v13, v14, 3, v13
v_lshrrev_b32 v14, 1, v6
v_lshl_add_u32 v13, v14, 2, v13
v_and_b32 v14, 3, v7
v_add3_u32 v13, v13, v14, s77""")
        p.emit("v_add_u32 v14, s78, v6\nv_and_b32 v14, 0x7f, v14")
        vdiv(p, 15, 14, 5, 127)
        p.emit("v_mul_u32_u24 v16, 5, v15\nv_sub_u32 v16, v14, v16")
        p.emit("""v_lshlrev_b32 v17, 3, v16
v_cmp_lt_u32 vcc, 2, v16
v_subrev_u32 v18, 4, v17
v_cndmask_b32 v17, v17, v18, vcc
v_add_u32 v17, v17, v7
v_lshl_add_u32 v18, v16, 3, v7
v_add_u32 v19, 16, v17
v_cmp_lt_u32 vcc, 19, v18
v_cmp_gt_u32 s[82:83], 24, v18
s_and_b64 vcc, vcc, s[82:83]
v_cndmask_b32 v17, v17, v19, vcc
v_mul_u32_u24 v15, 40, v15
v_add_u32 v17, v17, v15
v_cndmask_b32 v13, v17, v13, s[80:81]
v_mul_u32_u24 v13, 1280, v13
v_lshl_add_u32 v13, v5, 4, v13""")
        p.emit(f"s_add_u32 m0, s76, {mm*1024}\nbuffer_load_dwordx4 v13, s[44:47], s79 offen lds")
    p.raw("K0_noB2a:")
    p.emit("s_cmp_lt_u32 s64, 2\ns_cbranch_scc1 K0_noLN")
    p.emit("s_lshl_b32 s84, s2, 3\ns_sub_u32 s85, s64, 2\ns_lshl_b32 s85, s85, 2\ns_add_u32 s84, s84, s85")
    p.emit("v_lshrrev_b32 v3, 4, v2\nv_add_u32 v3, s84, v3\nv_and_b32 v4, 15, v2")
    p.emit("v_mul_u32_u24 v5, 1280, v3\nv_lshl_add_u32 v5, v4, 4, v5")
    for e in range(5):
        p.emit(f"buffer_load_dwordx4 v[{20+4*e}:{23+4*e}], v5, s[24:27], 0 offen offset:{256*e}")
    p.emit("""v_lshrrev_b32 v6, 5, v3
v_mul_u32_u24 v6, 40960, v6
v_and_b32 v7, 31, v3
v_lshl_add_u32 v6, v7, 4, v6
v_lshrrev_b32 v7, 1, v4
v_lshl_add_u32 v6, v7, 10, v6
v_and_b32 v7, 1, v4
v_lshl_add_u32 v6, v7, 9, v6""")
    p.emit("s_cmp_eq_u32 s64, 3\ns_cselect_b32 s86, s60, 99\ns_cmp_ge_u32 s86, 11\ns_cbranch_scc1 K0_noWP")
    p.emit("""s_cmp_ge_u32 s86, 3
s_cselect_b32 s87, 1, 0
s_cselect_b32 s88, 3, 0
s_cmp_ge_u32 s86, 8
s_cselect_b32 s87, 2, s87
s_cselect_b32 s88, 6, s88
s_sub_u32 s88, s86, s88
s_lshl_b32 s87, s87, 4
s_lshl_b32 s88, s88, 3
v_and_b32 v90, 31, v2
v_lshrrev_b32 v91, 5, v2
v_bfe_u32 v92, v90, 2, 1
v_lshrrev_b32 v93, 3, v90
v_and_b32 v94, 3, v90
v_lshl_add_u32 v93, v93, 2, v94
v_add_u32 v93, s87, v93
s_lshl_b32 s89, s61, 1
v_add_u32 v94, s89, v91
v_mul_u32_u24 v94, 800, v94
v_cmp_lt_u32 vcc, 19, v93
v_subrev_u32 v95, 20, v93
v_cndmask_b32 v95, v93, v95, vcc
v_lshl_add_u32 v94, v95, 1, v94""")
    p.emit(f"""v_mov_b32 v96, {BIG}
v_cmp_eq_u32 s[82:83], v91, v92
v_cmp_gt_u32 s[90:91], 40, v93
s_and_b64 s[82:83], s[82:83], s[90:91]
v_cndmask_b32 v94, v96, v94, s[82:83]
v_cndmask_b32 v97, v94, v96, vcc
v_cndmask_b32 v98, v96, v94, vcc""")
    for jj in range(8):
        p.emit(f"""s_add_u32 s92, s88, {jj}
s_cmp_ge_u32 s92, 20
s_cselect_b64 s[82:83], -1, 0
s_cselect_b32 s93, 20, 0
s_sub_u32 s92, s92, s93
s_mul_i32 s92, s92, 40
v_cndmask_b32 v99, v97, v98, s[82:83]
buffer_load_ushort v{100+jj}, v99, s[32:35], s92 offen""")
    for q in range(4):
        p.emit(f"v_lshl_or_b32 v{108+q}, v{101+2*q}, 16, v{100+2*q}")
    p.emit(f"s_mul_i32 s92, s61, 11264\ns_lshl_b32 s93, s86, 10\ns_add_u32 s92, s92, s93\ns_add_u32 s92, s92, {WPF}")
    p.emit("v_lshlrev_b32 v99, 4, v2\nbuffer_store_dwordx4 v[108:111], v99, s[48:51], s92 offen")
    p.raw("K0_noWP:")
    p.emit("s_waitcnt vmcnt(0)")
    for d in range(20):
        p.emit(f"v_lshlrev_b32 v{40+2*d}, 16, v{20+d}\nv_and_b32 v{41+2*d}, 0xffff0000, v{20+d}")
    p.emit("v_add_f32 v80, v40, v41\nv_add_f32 v81, v42, v43")
    for d in range(2, 20):
        p.emit(f"v_add_f32 v{80+(d&1)}, v{80+(d&1)}, v{40+2*d}\nv_add_f32 v{82+(d&1)}, v{82+(d&1) if d>3 else 41+2*d}, v{41+2*d}" if d > 3 else
               f"v_add_f32 v{80+(d&1)}, v{80+(d&1)}, v{40+2*d}\nv_mov_b32 v{82+(d&1)}, v{41+2*d}")
    p.emit("v_add_f32 v80, v80, v81\nv_add_f32 v82, v82, v83\nv_add_f32 v80, v80, v82")
    for k in (8, 4, 2, 1):
        p.emit(f"v_add_f32_dpp v80, v80, v80 row_ror:{k} row_mask:0xf bank_mask:0xf")
    p.emit("s_mov_b32 s92, 0x3acccccd\nv_mul_f32 v80, s92, v80")
    p.emit("v_sub_f32 v84, v40, v80\nv_sub_f32 v85, v41, v80\nv_mul_f32 v81, v84, v84\nv_mul_f32 v82, v85, v85")
    for d in range(1, 20):
        p.emit(f"v_sub_f32 v84, v{40+2*d}, v80\nv_sub_f32 v85, v{41+2*d}, v80\nv_fmac_f32 v81, v84, v84\nv_fmac_f32 v82, v85, v85")
    p.emit("v_add_f32 v81, v81, v82")
    for k in (8, 4, 2, 1):
        p.emit(f"v_add_f32_dpp v81, v81, v81 row_ror:{k} row_mask:0xf bank_mask:0xf")
    p.emit("""v_mul_f32 v81, s92, v81
v_cvt_pk_bf16_f32 v80, v80, v81
v_and_b32 v81, 0xffff0000, v80
v_lshlrev_b32 v80, 16, v80
v_add_f32 v81, 0x3727c5ac, v81
v_cvt_pk_bf16_f32 v81, v81, v81
v_lshlrev_b32 v81, 16, v81
v_sqrt_f32 v81, v81
v_cvt_pk_bf16_f32 v81, v81, v81
v_lshlrev_b32 v81, 16, v81
v_rcp_f32 v81, v81""")
    for d in range(20):
        p.emit(f"""v_sub_f32 v84, v{40+2*d}, v80
v_sub_f32 v85, v{41+2*d}, v80
v_cvt_pk_bf16_f32 v84, v84, v85
v_and_b32 v85, 0xffff0000, v84
v_lshlrev_b32 v84, 16, v84
v_mul_f32 v84, v84, v81
v_mul_f32 v85, v85, v81
v_cvt_pk_bf16_f32 v{20+d}, v84, v85""")
    for e in range(5):
        p.emit(f"s_mov_b32 s92, {XF + e*8192}\nbuffer_store_dwordx4 v[{20+4*e}:{23+4*e}], v6, s[48:51], s92 offen")
    p.raw("K0_noLN:")
    p.emit("s_waitcnt vmcnt(0)")
    p.emit("s_barrier")
    p.emit("s_cmp_ge_u32 s74, 68\ns_cbranch_scc1 K0_noB2b")
    p.emit(f"""v_lshrrev_b32 v3, 4, v2
v_bfe_u32 v4, v2, 2, 2
v_lshl_add_u32 v3, v3, 3, v4
v_mul_u32_u24 v3, 160, v3
v_and_b32 v4, 3, v2
v_mul_u32_u24 v4, 40, v4
v_add3_u32 v3, v3, v4, s76
s_mul_i32 s92, s63, 348160
s_mul_i32 s93, s74, 5120
s_add_u32 s92, s92, s93
s_add_u32 s92, s92, {B2F}
v_lshlrev_b32 v5, 4, v2""")
    for t in range(5):
        p.emit(f"ds_read_b64_tr_b16 v[{20+4*t}:{21+4*t}], v3 offset:{8*t}\nds_read_b64_tr_b16 v[{22+4*t}:{23+4*t}], v3 offset:{8*t+640}")
    for t in range(5):
        p.emit(f"buffer_store_dwordx4 v[{20+4*t}:{23+4*t}], v5, s[48:51], s92 offen")
        p.emit("s_add_u32 s92, s92, 1024")
    p.raw("K0_noB2b:")
    p.emit("s_waitcnt vmcnt(0) lgkmcnt(0)")
    p.emit("""v_lshrrev_b32 v3, 5, v2
v_bfe_u32 v4, v2, 4, 1
v_bfe_u32 v5, v2, 2, 2
v_and_b32 v6, 3, v2""")
    p.emit("""s_lshl_b32 s92, s64, 1
v_add_u32 v7, s92, v3
v_lshrrev_b32 v8, 1, v6
v_lshl_add_u32 v8, v4, 1, v8
v_lshl_add_u32 v8, v7, 2, v8
v_min_u32 v8, 14, v8""")
    vdiv(p, 9, 8, 5, 15)
    p.emit(f"""v_mul_u32_u24 v10, 5, v9
v_sub_u32 v10, v8, v10
v_mul_u32_u24 v9, 80, v9
v_lshl_add_u32 v9, v10, 3, v9
v_and_b32 v10, 1, v6
v_mul_u32_u24 v10, 40, v10
v_mul_u32_u24 v11, 240, v5
v_add3_u32 v9, v9, v10, v11""")
    p.emit(f"""v_mul_u32_u24 v10, {L3-L1}, v3
v_mul_u32_u24 v11, 192, v5
v_lshlrev_b32 v12, 5, v4
v_lshl_add_u32 v12, v6, 3, v12
v_add3_u32 v10, v10, v11, v12
v_add_u32 v10, {L1}, v10""")
    p.emit("v_and_b32 v12, 31, v2\nv_lshlrev_b32 v12, 4, v12\nv_lshl_add_u32 v12, v3, 10, v12")
    p.emit(f"""s_cmp_lt_u32 s64, 2
s_cselect_b64 s[80:81], -1, 0
s_cselect_b32 s94, 60, 48
s_cselect_b32 s95, 2, 1
s_lshl_b32 s94, s94, 4
s_lshl_b32 s93, s94, 1
s_lshl_b32 s95, s95, 11
s_sub_u32 s96, s64, 2
s_lshl_b32 s97, s96, 6
v_add_u32 v11, s97, v10
v_cndmask_b32 v11, v11, v9, s[80:81]
v_add_u32 v13, s94, v11
s_mul_i32 s96, s96, 81920
s_add_u32 s96, s96, 163840
s_lshl_b32 s97, s64, 11
s_cmp_lt_u32 s64, 2
s_cselect_b32 s96, s97, s96
s_mul_i32 s97, s61, 409600
s_add_u32 s97, s97, {B1F}
s_add_u32 s96, s96, s97
s_mul_i32 s98, s60, 5""")
    for k in range(5):
        p.emit(f"ds_read_b64_tr_b16 v[{20+4*k}:{21+4*k}], v11\nds_read_b64_tr_b16 v[{22+4*k}:{23+4*k}], v13")
        if k < 4: p.emit("v_add_u32 v11, s93, v11\nv_add_u32 v13, s93, v13")
    p.emit("s_mul_i32 s99, s64, 8*192\nv_add3_u32 v14, v10, s99, 64+64".replace("64+64", "v15") if False else "s_mul_i32 s99, s64, 8*192\nv_add_u32 v14, s99, v10")
    p.emit(f"ds_read_b64_tr_b16 v[40:41], v14 offset:128\nds_read_b64_tr_b16 v[42:43], v14 offset:{128+4*192}")
    p.emit(f"ds_read_b64_tr_b16 v[44:45], v10 offset:{128+32*192}\nds_read_b64_tr_b16 v[46:47], v10 offset:{128+36*192}")
    for k in range(5):
        p.emit(f"""s_add_u32 s99, s98, {k}
s_lshr_b32 s100, s99, 1
s_mul_i32 s100, s100, s95
s_and_b32 s99, s99, 1
s_lshl_b32 s99, s99, 9
s_add_u32 s99, s99, s100
s_add_u32 s99, s99, s96
buffer_store_dwordx4 v[{20+4*k}:{23+4*k}], v12, s[48:51], s99 offen""")
    p.emit(f"s_add_u32 s97, s97, {163840 + 2*81920}")
    for which in range(2):
        p.emit("s_add_u32 s99, s98, s64" if which == 0 else "s_add_u32 s99, s98, 4")
        p.emit("""s_lshr_b32 s100, s99, 1
s_lshl_b32 s100, s100, 11
s_and_b32 s99, s99, 1
s_lshl_b32 s99, s99, 9
s_add_u32 s99, s99, s100
s_add_u32 s99, s99, s97""")
        if which == 1:
            p.emit(f"s_cmp_lg_u32 s64, 0\ns_cbranch_scc1 K0_end")
        p.emit(f"buffer_store_dwordx4 v[{40+4*which}:{43+4*which}], v12, s[48:51], s99 offen")
    p.raw("K0_end:")
    p.emit("s_endpgm")
    return name, p, kd(name, 128, 128), (256, 256, 45056)

def softmax_fill(F, P, T, isq, OUT, sreg_keep, tmp):
    mx, mn, a, b, s1, s1b, s2, s2b = [tmp + i for i in range(8)]
    F.add(f"v_max3_f32 v{mx}, v{P}, v{P+1}, v{P+2}\nv_min3_f32 v{mn}, v{P}, v{P+1}, v{P+2}")
    for k in range(3, 19, 2):
        F.add(f"v_max3_f32 v{mx}, v{mx}, v{P+k}, v{P+k+1}\nv_min3_f32 v{mn}, v{mn}, v{P+k}, v{P+k+1}")
    F.add(f"v_max_f32 v{mx}, v{mx}, v{P+19}\nv_min_f32 v{mn}, v{mn}, v{P+19}")
    F.add(f"v_mul_f32 v{a}, s41, v{mx}\nv_mul_f32 v{b}, s40, v{mn}")
    for i in range(20):
        F.add(f"v_fma_f32 v{T+i}, v{P+i}, s40, v{a}\nv_fma_f32 v{P+i}, v{P+i}, s41, v{b}")
        F.add(f"v_exp_f32 v{T+i}, v{T+i}\nv_exp_f32 v{P+i}, v{P+i}")
        if i == 2:
            F.add(f"v_add_f32 v{s1}, v{T}, v{T+1}\nv_add_f32 v{s2}, v{P}, v{P+1}")
        elif i > 2:
            F.add(f"v_add_f32 v{s1}, v{s1}, v{T+i-1}\nv_add_f32 v{s2}, v{s2}, v{P+i-1}")
    F.add(f"v_add_f32 v{s1}, v{s1}, v{T+19}\nv_add_f32 v{s2}, v{s2}, v{P+19}")
    if isq:
        F.add(f"v_rcp_f32 v{s2}, v{s2}\nv_mul_f32 v{sreg_keep}, 0x358637bd, v{s1}\nv_mul_f32 v{s2}, v{s2}, v{s1}")
        for i in range(10):
            F.add(f"v_cvt_pk_bf16_f32 v{OUT+i}, v{T+2*i}, v{T+2*i+1}")
            F.add(f"v_mul_f32 v{P+2*i}, v{P+2*i}, v{s2}\nv_mul_f32 v{P+2*i+1}, v{P+2*i+1}, v{s2}")
        for i in range(10):
            F.add(f"v_cvt_pk_bf16_f32 v{OUT+10+i}, v{P+2*i}, v{P+2*i+1}")
    else:
        F.add(f"v_rcp_f32 v{s1}, v{s1}\nv_rcp_f32 v{s2}, v{s2}\nv_nop")
        for i in range(10):
            F.add(f"v_mul_f32 v{T+2*i}, v{T+2*i}, v{s1}\nv_mul_f32 v{T+2*i+1}, v{T+2*i+1}, v{s1}")
            F.add(f"v_mul_f32 v{P+2*i}, v{P+2*i}, v{s2}\nv_mul_f32 v{P+2*i+1}, v{P+2*i+1}, v{s2}")
            F.add(f"v_cvt_pk_bf16_f32 v{OUT+i}, v{T+2*i}, v{T+2*i+1}\nv_cvt_pk_bf16_f32 v{OUT+10+i}, v{P+2*i}, v{P+2*i+1}")

def silu_fill(F, G, U, tmp, OUT):
    for i in range(0, 16, 2):
        t0, t1 = tmp + (i & 2), tmp + (i & 2) + 1
        F.add(f"v_mul_f32 v{t0}, s41, v{G+i}\nv_mul_f32 v{t1}, s41, v{G+i+1}")
        F.add(f"v_exp_f32 v{t0}, v{t0}\nv_exp_f32 v{t1}, v{t1}")
        F.add(f"v_mul_f32 v{G+i}, v{G+i}, v{U+i}\nv_mul_f32 v{G+i+1}, v{G+i+1}, v{U+i+1}")
        F.add(f"v_add_f32 v{t0}, 1.0, v{t0}\nv_add_f32 v{t1}, 1.0, v{t1}")
        F.add(f"v_rcp_f32 v{t0}, v{t0}\nv_rcp_f32 v{t1}, v{t1}")
        if i >= 2:
            F.add(f"v_cvt_pk_bf16_f32 v{OUT+i//2-1}, v{G+i-2}, v{G+i-1}")
        else:
            F.add("v_nop")
        F.add(f"v_mul_f32 v{G+i}, v{G+i}, v{t0}\nv_mul_f32 v{G+i+1}, v{G+i+1}, v{t1}")
    F.add(f"v_cvt_pk_bf16_f32 v{OUT+7}, v{G+14}, v{G+15}")

def gen_k1(opt):
    p = Prog(); name = "ph1_kernel"
    header(p, name)
    R = 6; PD = 3; NB = 8
    RING, PHI, LWP, KVF = 0, 114688, 98304, 110592
    ZERO = KVF + 3360; DUMMY = ZERO + 80
    SC = opt.get("sc", " sc1")
    ACQ = 16
    AG0 = 80; AG1 = 112
    PP = 144
    PHQ = 192
    TT = 212
    TM = 232
    VS1 = 248
    vL16, vL16b, vDMA, vAFh, vAFo, vAFo2, vW0, vKA0, vKA1, vKB0, vKB1, vKP, vG0, vG1 = range(2, 16)
    vGS1, vKF0, vKF1, vFL, vFLs = 249, 250, 251, 252, 253
    XA = 0; BA = 160
    p.emit("s_cmp_ge_u32 s2, 256\ns_cbranch_scc1 K1_end")
    p.emit("s_load_dwordx2 s[20:21], s[0:1], 80")
    ids(p)
    p.emit("v_mov_b32 v254, v2")
    srd(p, 4, 20, WS_N)
    p.emit(f"s_lshl_b32 s22, s61, 8\ns_add_u32 s22, s22, {FLG+128}\ns_add_u32 s24, s20, s22\ns_addc_u32 s25, s21, 0\ns_load_dword s26, s[24:25], 0")
    rot = opt.get("rot", 1)
    if rot:
        p.emit("s_and_b32 s27, s60, 7\ns_cmp_ge_u32 s27, 5\ns_cselect_b32 s28, 5, 0\ns_sub_u32 s27, s27, s28\ns_lshl_b32 s27, s27, 3")
    else:
        p.emit("s_mov_b32 s27, 0")
    for m in range(10):
        p.emit(f"s_add_u32 s{70+m}, s27, {4*m}\ns_cmp_ge_u32 s{70+m}, 40\ns_cselect_b32 s28, 40, 0\ns_sub_u32 s{70+m}, s{70+m}, s28")
    p.emit(f"s_lshl_b32 s29, s60, 2\ns_add_u32 s29, s29, s64\ns_mul_i32 s30, s29, 40960\ns_add_u32 s30, s30, {XF}")
    p.emit(f"s_mul_i32 s31, s61, 409600\ns_add_u32 s31, s31, {B1F}")
    p.emit("s_lshl_b32 s32, s64, 12")
    p.emit(f"v_lshlrev_b32 v{vL16}, 4, v254\nv_add_u32 v{vL16b}, 0x10000, v{vL16}\nv_add_u32 v{vDMA}, s32, v{vL16}")
    def xload(m):
        p.emit(f"s_lshl_b32 s33, s{70+m}, 10\ns_add_u32 s33, s33, s30")
        for e in range(4):
            s = 4*m + e
            p.emit(f"buffer_load_dwordx4 a[{XA+4*s}:{XA+4*s+3}], v{vL16}, s[4:7], s33 offen offset:{1024*e}")
    def dma_setup(t):
        if t < 10: return f"s_lshl_b32 s34, s{70+t}, 12\ns_add_u32 s34, s34, s31\ns_add_u32 m0, s32, {RING + (t % R)*16384}"
        c = (t - 10)//5; m = (t - 10) % 5
        return f"s_lshl_b32 s34, s{70+2*m}, 11\ns_add_u32 s34, s34, s31\ns_add_u32 s34, s34, {163840 + c*81920}\ns_add_u32 m0, s32, {RING + (t % R)*16384}"
    def dma_ins(t, e): return f"buffer_load_dwordx4 v{vDMA}, s[4:7], s34 offen offset:{1024*e} lds"
    for t in range(R):
        p.emit(dma_setup(t))
        for e in range(4): p.emit(dma_ins(t, e), tok=f"D{t}")
        xload(t)
        if t == 1:
            p.emit(f"s_mul_i32 s35, s61, 11264\ns_add_u32 s35, s35, {WPF}\ns_mul_i32 s36, s64, 3072\ns_add_u32 s35, s35, s36\ns_add_u32 m0, s36, {LWP}")
            for e in range(3): p.emit(f"buffer_load_dwordx4 v{vL16}, s[4:7], s35 offen offset:{1024*e} lds", tok="WP")
    n, hh = 232, 233
    p.emit(f"""s_mov_b32 s40, {LOG2E}
s_mov_b32 s41, {NLOG2E}
v_and_b32 v{n}, 31, v254
v_lshrrev_b32 v{hh}, 5, v254
v_lshrrev_b32 v234, 4, v{n}
v_mul_u32_u24 v234, {AFRT}, v234
v_and_b32 v235, 15, v{n}
v_lshl_add_u32 v234, v235, 4, v234
v_lshl_add_u32 v{vAFh}, v{hh}, 9, v234
v_mul_u32_u24 v235, 768, v{hh}
v_add_u32 v{vAFo}, v234, v235
v_lshl_add_u32 v{vAFo2}, v{hh}, 3, v234
v_add_u32 v{vAFo2}, 512, v{vAFo2}
s_lshl_b32 s42, s29, 1
s_mul_i32 s42, s42, {AFRT}
s_add_u32 s42, s42, {AF}
s_lshl_b32 s43, s61, 10
s_add_u32 s43, s43, s42
s_mul_i32 s44, s61, 1280
s_add_u32 s44, s44, s42
s_add_u32 s44, s44, 49152""")
    p.emit(f"""v_and_b32 v234, 3, v{n}
v_lshlrev_b32 v234, 2, v234
v_bfe_u32 v235, v{n}, 2, 2
v_or_b32 v234, v234, v235
v_lshlrev_b32 v235, 2, v{hh}
v_xor_b32 v234, v234, v235
s_lshl_b32 s45, s64, 13
s_add_u32 s45, s45, {PHI}
v_lshlrev_b32 v235, 8, v{n}
v_lshl_add_u32 v234, v234, 4, v235
v_add_u32 v{vW0}, s45, v234""")
    p.emit(f"""s_lshr_b32 s46, s64, 1
s_lshl_b32 s46, s46, 2
s_and_b32 s47, s64, 1
v_bfe_u32 v234, v254, 4, 1
v_and_b32 v235, 3, v254
v_lshl_add_u32 v234, v234, 2, v235
v_bfe_u32 v235, v254, 2, 2
v_lshrrev_b32 v236, 1, v234
v_and_b32 v237, 1, v234
v_and_b32 v238, 2, v236
v_or_b32 v238, v238, v237
v_and_b32 v239, 1, v236
s_cmp_eq_u32 s47, 0
s_cselect_b64 s[48:49], -1, 0
v_add_u32 v240, 8, v236
v_cndmask_b32 v238, v240, v238, s[48:49]
v_cndmask_b32 v239, v237, v239, s[48:49]
v_add_u32 v238, s46, v238
v_add_u32 v240, 1, v236
v_and_b32 v240, 3, v240
v_add3_u32 v240, v240, s46, 8
v_lshlrev_b32 v241, 2, v235
v_lshl_add_u32 v241, v{hh}, 1, v241
v_lshl_add_u32 v242, v{hh}, 3, v235
v_lshlrev_b32 v242, 8, v242
v_add_u32 v242, {PHI}, v242""")
    for rd, (va, vb) in enumerate(((vKA0, vKB0), (vKA1, vKB1))):
        p.emit(f"""v_or_b32 v243, {rd}, v241
v_xor_b32 v244, v238, v243
v_lshlrev_b32 v244, 4, v244
v_lshl_add_u32 v244, v239, 3, v244
v_add3_u32 v{va}, v244, v242, {0}
v_xor_b32 v244, v240, v243
v_lshlrev_b32 v244, 4, v244
v_lshl_add_u32 v244, v237, 3, v244
v_add_u32 v{vb}, v244, v242""")
        if rd: p.emit(f"v_add_u32 v{va}, 1024, v{va}\nv_add_u32 v{vb}, 1024, v{vb}")
    p.emit(f"""v_mul_u32_u24 v234, 21, v{hh}
v_add_u32 v234, v234, v{n}
v_lshlrev_b32 v234, 4, v234
v_mov_b32 v235, {BIG}
v_cmp_gt_u32 vcc, 21, v{n}
v_cndmask_b32 v{vKP}, v235, v234, vcc
v_cndmask_b32 v1, v235, v{vKP}, s[48:49]
s_lshl_b32 s50, s61, 4
s_mul_i32 s51, s50, {KVS}
s_add_u32 s51, s51, {KVP}
s_mul_i32 s52, s60, {KVS}
s_add_u32 s52, s52, s51
s_lshr_b32 s53, s64, 1
s_mul_i32 s53, s53, 3360
s_add_u32 s52, s52, s53
s_mul_i32 s53, s47, 4*672
s_add_u32 s52, s52, s53""")
    p.emit(f"v_lshlrev_b32 v{vFLs}, 4, v0\nv_add_u32 v234, 4096, v{vFLs}\nv_cmp_gt_u32 vcc, 164, v0\nv_cndmask_b32 v{vGS1}, v235, v234, vcc")
    for rnd, vd in enumerate((vG0, vG1)):
        p.emit(f"v_add_u32 v236, {256*rnd}, v0")
        vdiv(p, 237, 236, 210, 511)
        p.emit("v_mul_u32_u24 v238, 210, v237\nv_sub_u32 v238, v236, v238")
        vdiv(p, 239, 238, 42, 209)
        p.emit("v_mul_u32_u24 v240, 42, v239\nv_sub_u32 v240, v238, v240")
        p.emit("v_cmp_lt_u32 vcc, 20, v240\nv_subrev_u32 v241, 21, v240\nv_cndmask_b32 v241, v240, v241, vcc\nv_cndmask_b32 v242, 0, 1, vcc")
        p.emit(f"""v_and_b32 v243, 2, v239
v_add_u32 v243, v243, v242
v_lshlrev_b32 v243, 4, v243
v_and_b32 v244, 1, v239
v_lshl_add_u32 v243, v244, 3, v243
v_lshl_add_u32 v244, v242, 3, 64
v_cmp_eq_u32 vcc, 4, v239
v_cndmask_b32 v243, v243, v244, vcc
v_mul_u32_u24 v237, 1680, v237
v_mul_u32_u24 v241, 80, v241
v_add3_u32 v243, v243, v237, v241
v_add_u32 v243, {KVF}, v243
v_mov_b32 v244, {DUMMY}
v_cmp_gt_u32 vcc, 420, v236
v_cndmask_b32 v{vd}, v244, v243, vcc""")
    p.emit(f"""v_bfe_u32 v234, v{n}, 2, 1
v_lshrrev_b32 v236, 3, v{n}
v_and_b32 v237, 3, v{n}
v_lshl_add_u32 v236, v236, 2, v237
v_mul_u32_u24 v237, 1680, v{hh}
v_mul_u32_u24 v238, 80, v236
v_add3_u32 v237, v237, v238, 0
v_add_u32 v237, {KVF}, v237
v_mov_b32 v238, {ZERO}
v_cmp_eq_u32 vcc, v234, v{hh}
v_cndmask_b32 v{vKF0}, v238, v237, vcc
v_add_u32 v237, 1280, v237
v_cmp_gt_u32 s[54:55], 5, v236
s_and_b64 vcc, vcc, s[54:55]
v_cndmask_b32 v{vKF1}, v238, v237, vcc""")
    p.emit(f"v_mov_b32 v234, 0\nv_lshlrev_b32 v236, 2, v254\nv_min_u32 v236, 76, v236\nv_add_u32 v236, {ZERO}, v236\nds_write_b32 v236, v234", )
    p.emit(f"""s_mul_i32 s26, s26, 0x41c64e6d
s_add_u32 s26, s26, 0x3039
s_lshl_b32 s56, s61, 8
s_add_u32 s56, s56, {FLG}
v_and_b32 v{vFL}, 15, v254
v_lshlrev_b32 v{vFL}, 2, v{vFL}
s_lshl_b32 s57, s60, 2
s_mov_b32 s58, 0
v_mov_b32 v234, s57
v_cmp_eq_u32 vcc, 0, v0
v_cndmask_b32 v255, v235, v234, vcc""")
    seq = []
    for t in range(10):
        for f in range(16):
            s = 4*t + f//4; seq.append((t, f, ACQ + 16*(f % 4), s, s == 0))
    accG = [AG0, AG1, ACQ]
    for c in range(3):
        for m in range(5):
            for f in range(16):
                s = 8*m + f//2; seq.append((10 + 5*c + m, f, accG[c] + 16*(f % 2), s, s == 0))
    NM = len(seq)
    state = {'bars': 0, 'bartoks': [], 'pos': 0}
    def bread(i):
        t, f = seq[i][0], seq[i][1]
        off = RING + (t % R)*16384 + f*1024
        v = vL16 if off < 65536 else vL16b
        b = BA + 4*(i % NB)
        p.emit(f"ds_read_b128 a[{b}:{b+3}], v{v} offset:{off & 0xffff}")
    dmaq = deque()
    def bar(t):
        p.wait_tok(f"D{t}", *state['bartoks']); state['bartoks'] = []
        p.emit("s_barrier"); state['bars'] += 1
        if t < 4: dmaq.append(('x', t + 6))
        if t >= 2 and t - 2 + R < 25:
            for e in range(4): dmaq.append(('d', t - 2 + R, e))
    F = Filler(); F.gap = 4
    def gate_pos(k):
        def chk(): return state['pos'] >= k
        F.q.append(['gate', chk])
    def need_bar(*toks):
        st = {}
        def arm(prog): state['bartoks'] += list(toks); st['n'] = state['bars']
        F.act(arm)
        F.q.append(['gate', lambda: state['bars'] > st['n']])
    def run(budget):
        while F.q and budget > 0:
            x = F.q[0]
            if isinstance(x, list):
                if x[0] == 'gate':
                    if not x[1](): return
                    F.q.popleft(); continue
                if x[1] > 0:
                    x[1] -= 1; return
                F.q.popleft(); continue
            if callable(x):
                F.q.popleft(); x(p); continue
            if not p.ready(x): return
            if x.kind == 'mfma':
                F.q.popleft(); p.emit(x); budget = 5; continue
            if x.cost > budget: return
            F.q.popleft(); p.emit(x); budget -= x.cost
    gate_pos(161)
    F.add("s_nop 0", waits=["WP"])
    BQ = TT
    WB = TM
    fr = [(0,0),(0,1),(0,2),(1,0),(1,1),(1,2),(1,3),(1,4),(2,2),(2,3),(2,4)]
    order = [8,9,10,3,4,5,6,7,0,1,2]
    def wpread(idx): return f"ds_read_b128 v[{WB+4*(idx%3)}:{WB+4*(idx%3)+3}], v{vL16b} offset:{LWP - 65536 + order[idx]*1024}"
    F.add(wpread(0)); F.add(wpread(1)); F.add(wpread(2))
    for i in list(range(8, 20)) + list(range(0, 8)):
        F.add(f"v_cvt_pk_bf16_f32 v{BQ+i}, v{ACQ+2*i}, v{ACQ+2*i+1}")
    seen = set()
    VV = ACQ
    for idx in range(11):
        tp, s = fr[order[idx]]
        c = f"v[{PP+16*tp}:{PP+16*tp+15}]" if tp in seen else "0"
        seen.add(tp)
        F.add(f"v_mfma_f32_32x32x16_bf16 v[{PP+16*tp}:{PP+16*tp+15}], v[{WB+4*(idx%3)}:{WB+4*(idx%3)+3}], v[{BQ+4*s}:{BQ+4*s+3}], {c}")
        if idx + 3 < 11: F.add(wpread(idx + 3))
        if idx < 10: F.add(f"v_cvt_pk_bf16_f32 v{VV+idx}, v{ACQ+40+2*idx}, v{ACQ+41+2*idx}")
    F.add(f"v_mov_b32 v{VV+10}, 0x3f80\nv_mov_b32 v{VV+11}, 0")
    for e in range(3):
        F.add(f"v_xor_b32 v{TM+12+e}, {(9+e)<<4}, v{vW0}\nds_write_b128 v{TM+12+e}, v[{VV+4*e}:{VV+4*e+3}]", tok="PH")
    PK = ACQ + 12
    softmax_fill(F, PP + 20, TT, False, PK, None, TM)
    for e in range(5):
        F.add(f"v_xor_b32 v{TM+8+e}, {(e if e < 4 else 8)<<4}, v{vW0}\nds_write_b128 v{TM+8+e}, v[{PK+4*e}:{PK+4*e+3}]", tok="PH")
    st_bar = {}
    def arm(prog):
        assert state['pos'] < 318, state['pos']
        print("PH writes done at pos", state['pos'], file=sys.stderr)
        state['bartoks'] += ["PH"]; st_bar['n'] = state['bars']
    F.act(arm)
    softmax_fill(F, PP, TT, True, PHQ, VS1, TM)
    F.q.append(['gate', lambda: state['bars'] > st_bar['n']])
    KD = ACQ + 32
    def kvread(ks):
        b = PP + 8*(ks % 4)
        return (f"ds_read_b64_tr_b16 v[{b}:{b+1}], v{vKA0} offset:{ks*4096}\nds_read_b64_tr_b16 v[{b+2}:{b+3}], v{vKA1} offset:{ks*4096}\n"
                f"ds_read_b64_tr_b16 v[{b+4}:{b+5}], v{vKB0} offset:{ks*4096}\nds_read_b64_tr_b16 v[{b+6}:{b+7}], v{vKB1} offset:{ks*4096}")
    for ks in range(3): F.add(kvread(ks))
    F.delay(1)
    for ks in range(8):
        b = PP + 8*(ks % 4)
        F.add(f"v_mfma_f32_32x32x16_bf16 v[{KD}:{KD+15}], v[{b}:{b+3}], v[{b+4}:{b+7}], {'0' if ks == 0 else f'v[{KD}:{KD+15}]'}")
        if ks + 3 < 8: F.add(kvread(ks + 3))
    gate_pos(241)
    HO = TT
    silu_fill(F, AG0, AG0 + 16, TM, HO)
    F.add(f"buffer_store_dwordx4 v[{KD}:{KD+3}], v{vKP}, s[4:7], s52 offen sc1", tok="KP")
    for e in range(1, 4):
        F.add(f"buffer_store_dwordx4 v[{KD+4*e}:{KD+4*e+3}], v1, s[4:7], s52 offen offset:{672*e} sc1", tok="KP")
    for u in range(2):
        F.add(f"buffer_store_dwordx4 v[{HO+4*u}:{HO+4*u+3}], v{vAFh}, s[4:7], s43 offen offset:{256*u}{SC}")
    F.act(lambda prog: print("kv publish at pos", state['pos'], file=sys.stderr))
    F.delay(opt.get("pubdelay", 14))
    need_bar("KP")
    F.add(f"v_mov_b32 v{TM}, s26\nbuffer_store_dword v{TM}, v255, s[4:7], s56 offen sc1")
    F.act(lambda prog: print("flag at pos", state['pos'], file=sys.stderr))
    gate_pos(321)
    silu_fill(F, AG1, AG1 + 16, TM, HO)
    F.add("s_add_u32 s43, s43, 16384")
    for u in range(2):
        F.add(f"buffer_store_dwordx4 v[{HO+4*u}:{HO+4*u+3}], v{vAFh}, s[4:7], s43 offen offset:{256*u}{SC}")
    F.add(f"buffer_load_dword v{TM+8}, v{vFL}, s[4:7], s56 offen sc1")
    F.delay(opt.get("polldelay", 16))
    def poll(prog):
        print("poll at pos", state['pos'], file=sys.stderr)
        prog.emit(f"v_cmp_ne_u32 vcc, s26, v{TM+8}")
        prog.emit("s_cbranch_vccnz K1_slow")
        prog.raw("K1_back:")
    F.act(poll)
    GB = AG0
    acc0, acc1 = TT + 8, TT + 12
    NG = 28
    loads = [(g2, rnd) for g2 in range(16) for rnd in range(2)]
    def gload(i):
        g2, rnd = loads[i]; b = GB + 4*(i % NG)
        s = ""
        if rnd == 0 and g2 > 0: s += f"s_add_u32 s51, s51, {KVS}\n"
        return s + f"buffer_load_dwordx4 v[{b}:{b+3}], v{vFLs if rnd == 0 else vGS1}, s[4:7], s51 offen sc1"
    for i in range(NG): F.add(gload(i))
    F.delay(opt.get("gdelay", 10))
    for i in range(32):
        g2, rnd = loads[i]; b = GB + 4*(i % NG); a = acc0 if rnd == 0 else acc1
        if g2 == 0: continue
        for e in range(4):
            src = f"v{GB + 4*rnd + e}" if g2 == 1 else f"v{a+e}"
            F.add(f"v_add_f32 v{a+e}, {src}, v{b+e}")
        if g2 == 1 and rnd == 1:
            for k in range(NG, 32): F.add(gload(k))
    for rnd, (a, vd) in enumerate(((acc0, vG0), (acc1, vG1))):
        F.add(f"v_cvt_pk_bf16_f32 v{a}, v{a}, v{a+1}\nv_cvt_pk_bf16_f32 v{a+1}, v{a+2}, v{a+3}\nds_write_b64 v{vd}, v[{a}:{a+1}]", tok="KF")
    bar(0)
    for i in range(PD): bread(i)
    for i in range(NM):
        t, f, acc, s, first = seq[i]
        b = BA + 4*(i % NB)
        p.emit(f"v_mfma_f32_32x32x16_bf16 v[{acc}:{acc+15}], a[{b}:{b+3}], a[{XA+4*s}:{XA+4*s+3}], {'0' if first else f'v[{acc}:{acc+15}]'}")
        state['pos'] = i + 1
        budget = 5
        if i + PD < NM:
            if seq[i + PD][1] == 0: bar(seq[i + PD][0])
            bread(i + PD)
        if dmaq and (i % 2 == 0):
            x = dmaq.popleft()
            if x[0] == 'x': xload(x[1]); budget -= 4
            else:
                if x[2] == 0: p.emit(dma_setup(x[1]))
                p.emit(dma_ins(x[1], x[2]), tok=f"D{x[1]}"); budget -= 1
        run(budget)
    left = F.cost()
    state['pos'] = 10**6
    while F.q:
        x = F.q[0]
        if isinstance(x, list):
            if x[0] == 'gate' and not x[1]():
                p.wait_tok(*state['bartoks']); state['bartoks'] = []; p.emit("s_barrier"); state['bars'] += 1
            F.q.popleft(); continue
        F.q.popleft()
        if callable(x): x(p)
        else: p.emit(x)
    p.wait_tok("KF"); p.emit("s_barrier")
    KB = AG0
    for tp in range(2):
        for s in range(5):
            b = KB + 4*(5*tp + s)
            p.emit(f"ds_read_b128 v[{b}:{b+3}], v{vKF0 if tp == 0 else vKF1} offset:{16*s}")
    T2 = Filler()
    silu_fill(T2, ACQ, ACQ + 16, TM, HO)
    T2.add("s_add_u32 s43, s43, 16384")
    for u in range(2):
        T2.add(f"buffer_store_dwordx4 v[{HO+4*u}:{HO+4*u+3}], v{vAFh}, s[4:7], s43 offen offset:{256*u}{SC}")
    OD = PP
    T2.run(p, 12)
    for s in range(5):
        for tp in (1, 0):
            b = KB + 4*(5*tp + s); d = OD + 16*tp
            p.emit(f"v_mfma_f32_32x32x16_bf16 v[{d}:{d+15}], v[{b}:{b+3}], v[{PHQ+4*s}:{PHQ+4*s+3}], {'0' if s == 0 else f'v[{d}:{d+15}]'}")
            T2.run(p, 6)
    T2.drain(p)
    p.emit(f"v_add_f32 v{TM}, v{OD+20}, v{VS1}\nv_rcp_f32 v{TM}, v{TM}")
    for i in range(20): p.emit(f"v_mul_f32 v{OD+i}, v{OD+i}, v{TM}")
    for i in range(10): p.emit(f"v_cvt_pk_bf16_f32 v{PHQ+i}, v{OD+2*i}, v{OD+2*i+1}")
    p.emit(f"buffer_store_dwordx4 v[{PHQ}:{PHQ+3}], v{vAFo}, s[4:7], s44 offen{SC}")
    p.emit(f"buffer_store_dwordx4 v[{PHQ+4}:{PHQ+7}], v{vAFo}, s[4:7], s44 offen offset:256{SC}")
    p.emit(f"buffer_store_dwordx2 v[{PHQ+8}:{PHQ+9}], v{vAFo2}, s[4:7], s44 offen{SC}")
    p.emit(f"s_cmp_lg_u32 s60, 0\ns_cbranch_scc1 K1_end\nv_mov_b32 v{TM}, s26\nbuffer_store_dword v{TM}, v255, s[4:7], s56 offen offset:128")
    p.raw("K1_end:")
    p.emit("s_endpgm")
    p.raw("K1_slow:")
    p.raw(f"buffer_load_dword v{TM+8}, v{vFL}, s[4:7], s56 offen sc1")
    p.raw("s_waitcnt vmcnt(0)")
    p.raw(f"v_cmp_ne_u32 vcc, s26, v{TM+8}")
    p.raw("s_nop 1")
    p.raw("s_cbranch_vccz K1_back")
    p.raw("s_sleep 1")
    p.raw("s_add_u32 s58, s58, 1")
    p.raw("s_cmp_lt_u32 s58, 0x8000")
    p.raw("s_cbranch_scc1 K1_slow")
    p.raw("s_branch K1_back")
    print(f"K1: filler left at end {left}, nops {p.stats['nop']}, instrs {len(p.out)}", file=sys.stderr)
    return name, p, kd(name, 512, 256), (256, 256, 147456)

def gen_k2(opt):
    p = Prog(); name = "ph2_kernel"
    header(p, name)
    NBUF = opt.get("nbuf", 6)
    ACC = 16
    p.emit("s_cmp_ge_u32 s2, 256\ns_cbranch_scc1 K2_end")
    p.emit("s_load_dwordx2 s[20:21], s[0:1], 80\ns_load_dwordx2 s[22:23], s[0:1], 0\ns_load_dwordx2 s[24:25], s[0:1], 64")
    ids(p)
    srd(p, 4, 20, WS_N)
    p.emit(f"v_lshlrev_b32 v3, 4, v2\nv_add_u32 v4, {AFRT}, v3\nv_add_u32 v5, {2*AFRT}, v3\nv_add_u32 v6, {3*AFRT}, v3\nv_add_u32 v7, 4096, v3")
    p.emit(f"""s_mul_i32 s30, s62, {4*AFRT}
s_add_u32 s30, s30, {AF}
s_mul_i32 s31, s63, 348160
s_add_u32 s31, s31, {B2F}
s_lshl_b32 s32, s64, 2
s_mul_i32 s33, s64, 5""")
    kss = [(32, 16*c + e) for c in range(3) for e in range(4)] + [(33, 48 + e) for e in range(5)]
    def loads(i):
        sr, k0 = kss[i]; b = 36*(i % NBUF)
        p.emit(f"s_add_u32 s34, s{sr}, {k0}\ns_lshl_b32 s35, s34, 10\ns_add_u32 s35, s35, s30\ns_mul_i32 s36, s34, 5120\ns_add_u32 s36, s36, s31")
        for t in range(5):
            p.emit(f"buffer_load_dwordx4 a[{b+16+4*t}:{b+19+4*t}], v{3 if t < 4 else 7}, s[4:7], s36 offen offset:{1024*t if t < 4 else 0}")
            if t < 4: p.emit(f"buffer_load_dwordx4 a[{b+4*t}:{b+4*t+3}], v{3+t}, s[4:7], s35 offen")
    for i in range(NBUF): loads(i)
    srd(p, 8, 22, 2048*1280); srd(p, 12, 24, 2048*1280)
    p.emit("""s_lshl_b32 s37, s62, 6
s_lshl_b32 s38, s64, 4
s_add_u32 s37, s37, s38
s_mul_i32 s37, s37, 1280
s_mul_i32 s38, s63, 160
s_add_u32 s37, s37, s38
v_and_b32 v8, 15, v2
v_mul_u32_u24 v8, 1280, v8
v_lshrrev_b32 v9, 4, v2
v_mul_u32_u24 v9, 40, v9
v_add_u32 v8, v8, v9""")
    XR = 100
    for i in range(17):
        b = 36*(i % NBUF)
        for rt in range(4):
            for t in range(5):
                d = ACC + 20*rt + 4*t
                p.emit(f"v_mfma_f32_16x16x32_bf16 v[{d}:{d+3}], a[{b+16+4*t}:{b+19+4*t}], a[{b+4*rt}:{b+4*rt+3}], {'0' if i == 0 else f'v[{d}:{d+3}]'}")
        if i + NBUF < 17: loads(i + NBUF)
        if i + NBUF == 17:
            p.emit(f"buffer_load_dwordx4 v[{XR}:{XR+3}], v8, s[8:11], s37 offen\nbuffer_load_dwordx4 v[{XR+4}:{XR+7}], v8, s[8:11], s37 offen offset:16\nbuffer_load_dwordx2 v[{XR+8}:{XR+9}], v8, s[8:11], s37 offen offset:32")
    RD = 112
    p.emit("s_nop 7")
    for w in range(4):
        p.emit(f"s_cmp_lg_u32 s64, {w}\ns_cbranch_scc1 K2_w{w}")
        sv = (deque(p.vm), deque(p.lg))
        for k in range(1, 4):
            rt = (w + k) & 3
            for t in range(5):
                d = ACC + 20*rt + 4*t
                p.emit(f"ds_write_b128 v3, v[{d}:{d+3}] offset:{(rt*3 + k-1)*5120 + t*1024}")
        if w != 0:
            for r in range(20): p.emit(f"v_mov_b32 v{ACC+r}, v{ACC+20*w+r}")
        p.emit("s_waitcnt lgkmcnt(0)")
        p.raw(f"K2_w{w}:")
        p.vm, p.lg = sv
    p.emit("s_barrier")
    p.emit("s_mul_i32 s38, s64, 15360\nv_add_u32 v9, s38, v3")
    for k in range(3):
        for t in range(5):
            b = RD + 20*k + 4*t
            p.emit(f"ds_read_b128 v[{b}:{b+3}], v9 offset:{k*5120 + t*1024}")
    XU = 176
    for d in range(10):
        p.emit(f"v_lshlrev_b32 v{XU+2*d}, 16, v{XR+d}\nv_and_b32 v{XU+2*d+1}, 0xffff0000, v{XR+d}")
    for r in range(20): p.emit(f"v_add_f32 v{ACC+r}, v{ACC+r}, v{XU+r}")
    for k in range(3):
        for r in range(20): p.emit(f"v_add_f32 v{ACC+r}, v{ACC+r}, v{RD+20*k+r}")
    for d in range(10): p.emit(f"v_cvt_pk_bf16_f32 v{XR+d}, v{ACC+2*d}, v{ACC+2*d+1}")
    p.emit(f"buffer_store_dwordx4 v[{XR}:{XR+3}], v8, s[12:15], s37 offen\nbuffer_store_dwordx4 v[{XR+4}:{XR+7}], v8, s[12:15], s37 offen offset:16\nbuffer_store_dwordx2 v[{XR+8}:{XR+9}], v8, s[12:15], s37 offen offset:32")
    p.raw("K2_end:")
    p.emit("s_endpgm")
    print(f"K2: nops {p.stats['nop']}, instrs {len(p.out)}", file=sys.stderr)
    return name, p, kd(name, 512, 256), (256, 256, 61440)

HEAD = open("cdna_kernels/" + NAME + ".s.ref").read().split("; Override launch")[0]
def build(opt={}):
    ks = [gen_k0(), gen_k1(opt), gen_k2(opt)]
    s = HEAD
    for name, p, k, (g, b, lds) in ks:
        s += f"; @launch kernel={name} grid=({g},1,1) block=({b},1,1) lds={lds}\n"
    s += '.amdgcn_target "amdgcn-amd-amdhsa--gfx950"\n.text\n'
    for name, p, k, _ in ks: s += p.text()
    s += '.section .rodata,"a"\n'
    for name, p, k, _ in ks: s += ".p2align 6\n" + k
    return s
if __name__ == "__main__":
    out = sys.argv[1] if len(sys.argv) > 1 else "cdna_kernels/" + NAME + ".s"
    open(out, "w").write(build())
```

```python
import gen1, re
base = gen1.build()
lines = base.split("\n")
L = {re.search(r"kernel=(\w+)", l).group(1): l for l in lines if l.startswith("; @launch")}
def mk(order, fn, empty=False):
    s = base
    for l in L.values(): s = s.replace(l + "\n", "")
    launch = "".join((L[k] if k in L else "; @launch kernel=nop_kernel grid=(256,1,1) block=(256,1,1) lds=0") + "\n" for k in order)
    s = s.replace('.amdgcn_target', launch + '.amdgcn_target', 1)
    if "nop" in order:
        s = s.replace('.section .rodata', '.globl nop_kernel\n.p2align 8\n.type nop_kernel,@function\nnop_kernel:\n    s_endpgm\n.section .rodata', 1)
        s += ".p2align 6\n" + gen1.kd("nop_kernel", 8, 8)
    open(fn, "w").write(s)
a, b, c = "prep_kernel", "ph1_kernel", "ph2_kernel"
mk([a,b,c], "var_a.s"); mk([a,b,c,"nop"], "var_b.s"); mk([a,b,c,"nop","nop","nop","nop"], "var_c.s")
mk([a,a,b,c], "var_d.s"); mk([a,b,b,c], "var_e.s"); mk([a,b,c,c], "var_f.s")
mk(["nop",a,b,c], "var_g.s"); mk(["nop","nop",a,b,c], "var_h.s"); mk([a,"nop",b,c], "var_i.s"); mk([a,b,"nop",c], "var_j.s")
```

```python
import sys
from asmdsl import *

NAME = "parallel_sum__linear_kernel_hedgehog__glu_gated_swiglu__prompt"
XF   = 0x0
B1F  = 0x300000
WPF  = 0xA00000
B2F  = 0xB00000
AF   = 0x1000000
KVP  = 0x1900000
FLG  = 0x1B00000
WS_N = 0x2000000
BIG  = 0x40000000
AFRT = 68 * 1024
KVS  = 6784
LOG2E = 0x3fb8aa3b
NLOG2E = 0xbfb8aa3b

def srd(p, d, base, nbytes):
    p.emit(f"s_mov_b32 s{d}, s{base}\ns_and_b32 s{d+1}, s{base+1}, 0xffff\ns_mov_b32 s{d+2}, {nbytes}\ns_mov_b32 s{d+3}, 0x20000")

def divmagic(n, maxv):
    for sh in (16, 18, 20):
        m = (1 << sh) // n + 1
        if all((v * m) >> sh == v // n for v in range(maxv + 1)) and maxv * m < (1 << 32) and m < (1<<24): return m, sh
    raise ValueError

def vdiv(p, dst, src, n, maxv):
    m, sh = divmagic(n, maxv)
    p.emit(f"v_mul_u32_u24 v{dst}, {m}, v{src}\nv_lshrrev_b32 v{dst}, {sh}, v{dst}")

def header(p, name):
    p.raw(f".globl {name}"); p.raw(".p2align 8"); p.raw(f".type {name},@function"); p.raw(f"{name}:")

def kd(name, vgpr, accum):
    return f""".amdhsa_kernel {name}
  .amdhsa_next_free_vgpr {vgpr}
  .amdhsa_next_free_sgpr 102
  .amdhsa_accum_offset {accum}
  .amdhsa_group_segment_fixed_size 0
  .amdhsa_kernarg_size 88
  .amdhsa_user_sgpr_count 2
  .amdhsa_user_sgpr_kernarg_segment_ptr 1
  .amdhsa_system_sgpr_workgroup_id_x 1
  .amdhsa_float_denorm_mode_32 3
.end_amdhsa_kernel
"""

def ids(p):
    p.emit("""s_and_b32 s56, s2, 7
s_lshr_b32 s57, s2, 3
s_and_b32 s58, s56, 1
s_lshr_b32 s59, s56, 1
s_lshr_b32 s65, s57, 2
s_and_b32 s66, s57, 3
s_lshl_b32 s60, s58, 3
s_add_u32 s60, s60, s65
s_lshl_b32 s61, s59, 2
s_add_u32 s61, s61, s66
s_lshl_b32 s62, s59, 3
s_add_u32 s62, s62, s65
s_lshl_b32 s63, s58, 2
s_add_u32 s63, s63, s66
v_lshrrev_b32 v1, 6, v0
v_readfirstlane_b32 s64, v1
v_and_b32 v2, 63, v0""")

STAMP = 0x1C00000
class Stamps:
    def __init__(self, p, on, kidx, regs=None): self.p = p; self.on = on; self.n = 0; self.k = kidx; self.regs = regs or list(range(80, 102, 2)); self.names = []
    def __call__(self, name):
        if not self.on: return
        r = self.regs[self.n]; self.n += 1; self.names.append(name)
        self.p.emit(f"s_memrealtime s[{r}:{r+1}]" if name[0] != 'c' else f"s_memtime s[{r}:{r+1}]")
    def flush(self, srd, vt):
        if not self.on: return
        p = self.p
        p.emit("s_waitcnt lgkmcnt(0)")
        p.emit(f"s_lshl_b32 s3, s2, 8\ns_add_u32 s3, s3, {STAMP + self.k*65536}\nv_and_b32 v{vt+1}, 0xc0, v0\nv_mov_b32 v{vt+2}, {BIG}\nv_and_b32 v{vt}, 63, v0\nv_cmp_eq_u32 vcc, 0, v{vt}\nv_cndmask_b32 v{vt}, v{vt+2}, v{vt+1}, vcc")
        for i in range(self.n):
            p.emit(f"v_mov_b32 v{vt+1}, s{self.regs[i]}\nbuffer_store_dword v{vt+1}, v{vt}, s[{srd}:{srd+3}], s3 offen offset:{4*i}")
        print("stamps", self.k, self.names, file=sys.stderr)

def gen_k0(opt={}):
    p = Prog(); name = "prep_kernel"
    header(p, name)
    LQ, L1, L3, LB = 0, 12288, 20480, 28672
    p.emit("s_cmp_ge_u32 s2, 256\ns_cbranch_scc1 K0_end")
    ST = Stamps(p, opt.get("stamp"), 0, [52, 54, 18, 22, 66, 68]); ST("start")
    p.emit("s_load_dwordx8 s[4:11], s[0:1], 0\ns_load_dwordx4 s[12:15], s[0:1], 40\ns_load_dwordx2 s[16:17], s[0:1], 56\ns_load_dwordx2 s[20:21], s[0:1], 80")
    ids(p)
    srd(p, 24, 4, 2048*1280); srd(p, 28, 6, 640*3840); srd(p, 32, 8, 25600)
    srd(p, 36, 12, 640*3072); srd(p, 40, 14, 640*3072); srd(p, 48, 20, WS_N)
    p.emit("s_mul_i32 s70, s60, 40*3840\ns_mul_i32 s71, s61, 80\ns_add_u32 s70, s70, s71")
    p.emit("s_mul_i32 s72, s60, 40*3072\ns_mul_i32 s71, s61, 192\ns_add_u32 s72, s72, s71")
    p.emit("s_lshl_b32 s73, s64, 10")
    for mm in range(3):
        p.emit(f"v_add_u32 v3, {256*mm}, v0")
        vdiv(p, 4, 3, 15, 767)
        p.emit("v_mul_u32_u24 v5, 15, v4\nv_sub_u32 v5, v3, v5")
        vdiv(p, 6, 5, 5, 14)
        p.emit("v_mul_u32_u24 v7, 5, v6\nv_sub_u32 v7, v5, v7")
        p.emit("v_mul_u32_u24 v4, 3840, v4\nv_mul_u32_u24 v6, 1280, v6\nv_lshlrev_b32 v7, 4, v7\nv_add3_u32 v4, v4, v6, v7")
        p.emit(f"v_cmp_gt_u32 vcc, 600, v3\nv_mov_b32 v5, {BIG}\nv_cndmask_b32 v{8+mm}, v5, v4, vcc")
    for mm in range(2):
        p.emit(f"v_add_u32 v3, {256*mm}, v0")
        vdiv(p, 4, 3, 12, 511)
        p.emit("v_mul_u32_u24 v5, 12, v4\nv_sub_u32 v5, v3, v5")
        p.emit("v_mul_u32_u24 v4, 3072, v4\nv_lshl_add_u32 v4, v5, 4, v4")
        p.emit(f"v_cmp_gt_u32 vcc, 480, v3\nv_mov_b32 v5, {BIG}\nv_cndmask_b32 v{11+mm}, v5, v4, vcc")
    for mm in range(3):
        p.emit(f"s_add_u32 m0, s73, {LQ + mm*4096}\nbuffer_load_dwordx4 v{8+mm}, s[28:31], s70 offen lds")
    for mm in range(2):
        p.emit(f"s_add_u32 m0, s73, {L1 + mm*4096}\nbuffer_load_dwordx4 v{11+mm}, s[36:39], s72 offen lds")
        p.emit(f"s_add_u32 m0, s73, {L3 + mm*4096}\nbuffer_load_dwordx4 v{11+mm}, s[40:43], s72 offen lds")
    ST("dma_issued")
    p.emit("s_lshl_b32 s74, s62, 1\ns_add_u32 s74, s74, s64\ns_add_u32 s75, s62, 64\ns_cmp_lt_u32 s64, 2\ns_cselect_b32 s74, s74, s75")
    p.emit("s_cmp_eq_u32 s64, 3\ns_cselect_b32 s74, 100, s74")
    p.emit("s_cmp_ge_u32 s74, 68\ns_cbranch_scc1 K0_noB2a")
    p.emit("s_cmp_lt_u32 s74, 48\ns_cselect_b32 s44, s16, s10\ns_cselect_b32 s45, s17, s11\ns_mov_b32 s46, 640*1280\ns_cselect_b32 s46, 1536*1280, s46\ns_and_b32 s45, s45, 0xffff\ns_mov_b32 s47, 0x20000")
    p.emit(f"s_mul_i32 s76, s64, 5120\ns_add_u32 s76, s76, {LB}")
    p.emit("s_lshr_b32 s77, s74, 4\ns_and_b32 s78, s74, 15\ns_mul_i32 s78, s78, 96\ns_lshl_b32 s77, s77, 5\ns_add_u32 s77, s77, s78")
    p.emit("s_sub_u32 s78, s74, 48\ns_lshl_b32 s78, s78, 2")
    p.emit("s_cmp_lt_u32 s74, 48\ns_cselect_b64 s[80:81], -1, 0")
    p.emit("s_mul_i32 s79, s63, 160")
    for mm in range(5):
        p.emit(f"v_add_u32 v3, {64*mm}, v2")
        vdiv(p, 4, 3, 10, 319)
        p.emit("v_mul_u32_u24 v5, 10, v4\nv_sub_u32 v5, v3, v5")
        p.emit("v_lshrrev_b32 v6, 3, v4\nv_and_b32 v7, 7, v4")
        p.emit("""v_and_b32 v13, 1, v6
v_lshlrev_b32 v13, 4, v13
v_lshrrev_b32 v14, 2, v7
v_lshl_add_u32 v13, v14, 3, v13
v_lshrrev_b32 v14, 1, v6
v_lshl_add_u32 v13, v14, 2, v13
v_and_b32 v14, 3, v7
v_add3_u32 v13, v13, v14, s77""")
        p.emit("v_add_u32 v14, s78, v6\nv_and_b32 v14, 0x7f, v14")
        vdiv(p, 15, 14, 5, 127)
        p.emit("v_mul_u32_u24 v16, 5, v15\nv_sub_u32 v16, v14, v16")
        p.emit("""v_lshlrev_b32 v17, 3, v16
v_cmp_lt_u32 vcc, 2, v16
v_subrev_u32 v18, 4, v17
v_cndmask_b32 v17, v17, v18, vcc
v_add_u32 v17, v17, v7
v_lshl_add_u32 v18, v16, 3, v7
v_add_u32 v19, 16, v17
v_cmp_lt_u32 vcc, 19, v18
v_cmp_gt_u32 s[82:83], 24, v18
s_and_b64 vcc, vcc, s[82:83]
v_cndmask_b32 v17, v17, v19, vcc
v_mul_u32_u24 v15, 40, v15
v_add_u32 v17, v17, v15
v_cndmask_b32 v13, v17, v13, s[80:81]
v_mul_u32_u24 v13, 1280, v13
v_lshl_add_u32 v13, v5, 4, v13""")
        p.emit(f"s_add_u32 m0, s76, {mm*1024}\nbuffer_load_dwordx4 v13, s[44:47], s79 offen lds")
    p.raw("K0_noB2a:")
    p.emit("s_cmp_lt_u32 s64, 2\ns_cbranch_scc1 K0_noLN")
    p.emit("s_lshl_b32 s84, s2, 3\ns_sub_u32 s85, s64, 2\ns_lshl_b32 s85, s85, 2\ns_add_u32 s84, s84, s85")
    p.emit("v_lshrrev_b32 v3, 4, v2\nv_add_u32 v3, s84, v3\nv_and_b32 v4, 15, v2")
    p.emit("v_mul_u32_u24 v5, 1280, v3\nv_lshl_add_u32 v5, v4, 4, v5")
    for e in range(5):
        p.emit(f"buffer_load_dwordx4 v[{20+4*e}:{23+4*e}], v5, s[24:27], 0 offen offset:{256*e}")
    p.emit("""v_lshrrev_b32 v6, 5, v3
v_mul_u32_u24 v6, 40960, v6
v_and_b32 v7, 31, v3
v_lshl_add_u32 v6, v7, 4, v6
v_lshrrev_b32 v7, 1, v4
v_lshl_add_u32 v6, v7, 10, v6
v_and_b32 v7, 1, v4
v_lshl_add_u32 v6, v7, 9, v6""")
    p.emit("s_cmp_eq_u32 s64, 3\ns_cselect_b32 s86, s60, 99\ns_cmp_ge_u32 s86, 11\ns_cbranch_scc1 K0_noWP")
    p.emit("""s_cmp_ge_u32 s86, 3
s_cselect_b32 s87, 1, 0
s_cselect_b32 s88, 3, 0
s_cmp_ge_u32 s86, 8
s_cselect_b32 s87, 2, s87
s_cselect_b32 s88, 6, s88
s_sub_u32 s88, s86, s88
s_lshl_b32 s87, s87, 4
s_lshl_b32 s88, s88, 3
v_and_b32 v90, 31, v2
v_lshrrev_b32 v91, 5, v2
v_bfe_u32 v92, v90, 2, 1
v_lshrrev_b32 v93, 3, v90
v_and_b32 v94, 3, v90
v_lshl_add_u32 v93, v93, 2, v94
v_add_u32 v93, s87, v93
s_lshl_b32 s89, s61, 1
v_add_u32 v94, s89, v91
v_mul_u32_u24 v94, 800, v94
v_cmp_lt_u32 vcc, 19, v93
v_subrev_u32 v95, 20, v93
v_cndmask_b32 v95, v93, v95, vcc
v_lshl_add_u32 v94, v95, 1, v94""")
    p.emit(f"""v_mov_b32 v96, {BIG}
v_cmp_eq_u32 s[82:83], v91, v92
v_cmp_gt_u32 s[90:91], 40, v93
s_and_b64 s[82:83], s[82:83], s[90:91]
v_cndmask_b32 v94, v96, v94, s[82:83]
v_cndmask_b32 v97, v94, v96, vcc
v_cndmask_b32 v98, v96, v94, vcc""")
    for jj in range(8):
        p.emit(f"""s_add_u32 s92, s88, {jj}
s_cmp_ge_u32 s92, 20
s_cselect_b64 s[82:83], -1, 0
s_cselect_b32 s93, 20, 0
s_sub_u32 s92, s92, s93
s_mul_i32 s92, s92, 40
v_cndmask_b32 v99, v97, v98, s[82:83]
buffer_load_ushort v{100+jj}, v99, s[32:35], s92 offen""")
    for q in range(4):
        p.emit(f"v_lshl_or_b32 v{108+q}, v{101+2*q}, 16, v{100+2*q}")
    p.emit(f"s_mul_i32 s92, s61, 11264\ns_lshl_b32 s93, s86, 10\ns_add_u32 s92, s92, s93\ns_add_u32 s92, s92, {WPF}")
    p.emit("v_lshlrev_b32 v99, 4, v2\nbuffer_store_dwordx4 v[108:111], v99, s[48:51], s92 offen")
    p.raw("K0_noWP:")
    p.emit("s_waitcnt vmcnt(0)")
    for d in range(20):
        p.emit(f"v_lshlrev_b32 v{40+2*d}, 16, v{20+d}\nv_and_b32 v{41+2*d}, 0xffff0000, v{20+d}")
    p.emit("v_add_f32 v80, v40, v41\nv_add_f32 v81, v42, v43")
    for d in range(2, 20):
        p.emit(f"v_add_f32 v{80+(d&1)}, v{80+(d&1)}, v{40+2*d}\nv_add_f32 v{82+(d&1)}, v{82+(d&1) if d>3 else 41+2*d}, v{41+2*d}" if d > 3 else
               f"v_add_f32 v{80+(d&1)}, v{80+(d&1)}, v{40+2*d}\nv_mov_b32 v{82+(d&1)}, v{41+2*d}")
    p.emit("v_add_f32 v80, v80, v81\nv_add_f32 v82, v82, v83\nv_add_f32 v80, v80, v82")
    for k in (8, 4, 2, 1):
        p.emit(f"v_add_f32_dpp v80, v80, v80 row_ror:{k} row_mask:0xf bank_mask:0xf")
    p.emit("s_mov_b32 s92, 0x3acccccd\nv_mul_f32 v80, s92, v80")
    p.emit("v_sub_f32 v84, v40, v80\nv_sub_f32 v85, v41, v80\nv_mul_f32 v81, v84, v84\nv_mul_f32 v82, v85, v85")
    for d in range(1, 20):
        p.emit(f"v_sub_f32 v84, v{40+2*d}, v80\nv_sub_f32 v85, v{41+2*d}, v80\nv_fmac_f32 v81, v84, v84\nv_fmac_f32 v82, v85, v85")
    p.emit("v_add_f32 v81, v81, v82")
    for k in (8, 4, 2, 1):
        p.emit(f"v_add_f32_dpp v81, v81, v81 row_ror:{k} row_mask:0xf bank_mask:0xf")
    p.emit("""v_mul_f32 v81, s92, v81
v_cvt_pk_bf16_f32 v80, v80, v81
v_and_b32 v81, 0xffff0000, v80
v_lshlrev_b32 v80, 16, v80
v_add_f32 v81, 0x3727c5ac, v81
v_cvt_pk_bf16_f32 v81, v81, v81
v_lshlrev_b32 v81, 16, v81
v_sqrt_f32 v81, v81
v_cvt_pk_bf16_f32 v81, v81, v81
v_lshlrev_b32 v81, 16, v81
v_rcp_f32 v81, v81""")
    for d in range(20):
        p.emit(f"""v_sub_f32 v84, v{40+2*d}, v80
v_sub_f32 v85, v{41+2*d}, v80
v_cvt_pk_bf16_f32 v84, v84, v85
v_and_b32 v85, 0xffff0000, v84
v_lshlrev_b32 v84, 16, v84
v_mul_f32 v84, v84, v81
v_mul_f32 v85, v85, v81
v_cvt_pk_bf16_f32 v{20+d}, v84, v85""")
    for e in range(5):
        p.emit(f"s_mov_b32 s92, {XF + e*8192}\nbuffer_store_dwordx4 v[{20+4*e}:{23+4*e}], v6, s[48:51], s92 offen")
    p.raw("K0_noLN:")
    p.emit("s_waitcnt vmcnt(0)")
    ST("prebar")
    p.emit("s_barrier")
    ST("postbar")
    p.emit("s_cmp_ge_u32 s74, 68\ns_cbranch_scc1 K0_noB2b")
    p.emit(f"""v_lshrrev_b32 v3, 4, v2
v_bfe_u32 v4, v2, 2, 2
v_lshl_add_u32 v3, v3, 3, v4
v_mul_u32_u24 v3, 160, v3
v_and_b32 v4, 3, v2
v_mul_u32_u24 v4, 40, v4
v_add3_u32 v3, v3, v4, s76
s_mul_i32 s92, s63, 348160
s_mul_i32 s93, s74, 5120
s_add_u32 s92, s92, s93
s_add_u32 s92, s92, {B2F}
v_lshlrev_b32 v5, 4, v2""")
    for t in range(5):
        p.emit(f"ds_read_b64_tr_b16 v[{20+4*t}:{21+4*t}], v3 offset:{8*t}\nds_read_b64_tr_b16 v[{22+4*t}:{23+4*t}], v3 offset:{8*t+640}")
    for t in range(5):
        p.emit(f"buffer_store_dwordx4 v[{20+4*t}:{23+4*t}], v5, s[48:51], s92 offen")
        p.emit("s_add_u32 s92, s92, 1024")
    p.raw("K0_noB2b:")
    p.emit("s_waitcnt vmcnt(0) lgkmcnt(0)")
    p.emit("""v_lshrrev_b32 v3, 5, v2
v_bfe_u32 v4, v2, 4, 1
v_bfe_u32 v5, v2, 2, 2
v_and_b32 v6, 3, v2""")
    p.emit("""s_lshl_b32 s92, s64, 1
v_add_u32 v7, s92, v3
v_lshrrev_b32 v8, 1, v6
v_lshl_add_u32 v8, v4, 1, v8
v_lshl_add_u32 v8, v7, 2, v8
v_min_u32 v8, 14, v8""")
    vdiv(p, 9, 8, 5, 15)
    p.emit(f"""v_mul_u32_u24 v10, 5, v9
v_sub_u32 v10, v8, v10
v_mul_u32_u24 v9, 80, v9
v_lshl_add_u32 v9, v10, 3, v9
v_and_b32 v10, 1, v6
v_mul_u32_u24 v10, 40, v10
v_mul_u32_u24 v11, 240, v5
v_add3_u32 v9, v9, v10, v11""")
    p.emit(f"""v_mul_u32_u24 v10, {L3-L1}, v3
v_mul_u32_u24 v11, 192, v5
v_lshlrev_b32 v12, 5, v4
v_lshl_add_u32 v12, v6, 3, v12
v_add3_u32 v10, v10, v11, v12
v_add_u32 v10, {L1}, v10""")
    p.emit("v_and_b32 v12, 31, v2\nv_lshlrev_b32 v12, 4, v12\nv_lshl_add_u32 v12, v3, 10, v12")
    p.emit(f"""s_cmp_lt_u32 s64, 2
s_cselect_b64 s[80:81], -1, 0
s_cselect_b32 s94, 60, 48
s_cselect_b32 s95, 2, 1
s_lshl_b32 s94, s94, 4
s_lshl_b32 s93, s94, 1
s_lshl_b32 s95, s95, 11
s_sub_u32 s96, s64, 2
s_lshl_b32 s97, s96, 6
v_add_u32 v11, s97, v10
v_cndmask_b32 v11, v11, v9, s[80:81]
v_add_u32 v13, s94, v11
s_mul_i32 s96, s96, 81920
s_add_u32 s96, s96, 163840
s_lshl_b32 s97, s64, 11
s_cmp_lt_u32 s64, 2
s_cselect_b32 s96, s97, s96
s_mul_i32 s97, s61, 409600
s_add_u32 s97, s97, {B1F}
s_add_u32 s96, s96, s97
s_mul_i32 s98, s60, 5""")
    for k in range(5):
        p.emit(f"ds_read_b64_tr_b16 v[{20+4*k}:{21+4*k}], v11\nds_read_b64_tr_b16 v[{22+4*k}:{23+4*k}], v13")
        if k < 4: p.emit("v_add_u32 v11, s93, v11\nv_add_u32 v13, s93, v13")
    p.emit("s_mul_i32 s99, s64, 8*192\nv_add3_u32 v14, v10, s99, 64+64".replace("64+64", "v15") if False else "s_mul_i32 s99, s64, 8*192\nv_add_u32 v14, s99, v10")
    p.emit(f"ds_read_b64_tr_b16 v[40:41], v14 offset:128\nds_read_b64_tr_b16 v[42:43], v14 offset:{128+4*192}")
    p.emit(f"ds_read_b64_tr_b16 v[44:45], v10 offset:{128+32*192}\nds_read_b64_tr_b16 v[46:47], v10 offset:{128+36*192}")
    for k in range(5):
        p.emit(f"""s_add_u32 s99, s98, {k}
s_lshr_b32 s100, s99, 1
s_mul_i32 s100, s100, s95
s_and_b32 s99, s99, 1
s_lshl_b32 s99, s99, 9
s_add_u32 s99, s99, s100
s_add_u32 s99, s99, s96
buffer_store_dwordx4 v[{20+4*k}:{23+4*k}], v12, s[48:51], s99 offen""")
    p.emit(f"s_add_u32 s97, s97, {163840 + 2*81920}")
    for which in range(2):
        p.emit("s_add_u32 s99, s98, s64" if which == 0 else "s_add_u32 s99, s98, 4")
        p.emit("""s_lshr_b32 s100, s99, 1
s_lshl_b32 s100, s100, 11
s_and_b32 s99, s99, 1
s_lshl_b32 s99, s99, 9
s_add_u32 s99, s99, s100
s_add_u32 s99, s99, s97""")
        if which == 1:
            ST("end"); ST.flush(48, 60)
            p.emit(f"s_cmp_lg_u32 s64, 0\ns_cbranch_scc1 K0_end")
        p.emit(f"buffer_store_dwordx4 v[{40+4*which}:{43+4*which}], v12, s[48:51], s99 offen")
    p.raw("K0_end:")
    p.emit("s_endpgm")
    return name, p, kd(name, 128, 128), (256, 256, 45056)

def softmax_fill(F, P, T, isq, OUT, sreg_keep, tmp):
    mx, mn, a, b, s1, s1b, s2, s2b = [tmp + i for i in range(8)]
    F.add(f"v_max3_f32 v{mx}, v{P}, v{P+1}, v{P+2}\nv_min3_f32 v{mn}, v{P}, v{P+1}, v{P+2}")
    for k in range(3, 19, 2):
        F.add(f"v_max3_f32 v{mx}, v{mx}, v{P+k}, v{P+k+1}\nv_min3_f32 v{mn}, v{mn}, v{P+k}, v{P+k+1}")
    F.add(f"v_max_f32 v{mx}, v{mx}, v{P+19}\nv_min_f32 v{mn}, v{mn}, v{P+19}")
    F.add(f"v_mul_f32 v{a}, s41, v{mx}\nv_mul_f32 v{b}, s40, v{mn}")
    for i in range(20):
        F.add(f"v_fma_f32 v{T+i}, v{P+i}, s40, v{a}\nv_fma_f32 v{P+i}, v{P+i}, s41, v{b}")
        F.add(f"v_exp_f32 v{T+i}, v{T+i}\nv_exp_f32 v{P+i}, v{P+i}")
        if i == 2:
            F.add(f"v_add_f32 v{s1}, v{T}, v{T+1}\nv_add_f32 v{s2}, v{P}, v{P+1}")
        elif i > 2:
            F.add(f"v_add_f32 v{s1}, v{s1}, v{T+i-1}\nv_add_f32 v{s2}, v{s2}, v{P+i-1}")
    F.add(f"v_add_f32 v{s1}, v{s1}, v{T+19}\nv_add_f32 v{s2}, v{s2}, v{P+19}")
    if isq:
        F.add(f"v_rcp_f32 v{s2}, v{s2}\nv_mul_f32 v{sreg_keep}, 0x358637bd, v{s1}\nv_mul_f32 v{s2}, v{s2}, v{s1}")
        for i in range(10):
            F.add(f"v_cvt_pk_bf16_f32 v{OUT+i}, v{T+2*i}, v{T+2*i+1}")
            F.add(f"v_mul_f32 v{P+2*i}, v{P+2*i}, v{s2}\nv_mul_f32 v{P+2*i+1}, v{P+2*i+1}, v{s2}")
        for i in range(10):
            F.add(f"v_cvt_pk_bf16_f32 v{OUT+10+i}, v{P+2*i}, v{P+2*i+1}")
    else:
        F.add(f"v_rcp_f32 v{s1}, v{s1}\nv_rcp_f32 v{s2}, v{s2}\nv_nop")
        for i in range(10):
            F.add(f"v_mul_f32 v{T+2*i}, v{T+2*i}, v{s1}\nv_mul_f32 v{T+2*i+1}, v{T+2*i+1}, v{s1}")
            F.add(f"v_mul_f32 v{P+2*i}, v{P+2*i}, v{s2}\nv_mul_f32 v{P+2*i+1}, v{P+2*i+1}, v{s2}")
            F.add(f"v_cvt_pk_bf16_f32 v{OUT+i}, v{T+2*i}, v{T+2*i+1}\nv_cvt_pk_bf16_f32 v{OUT+10+i}, v{P+2*i}, v{P+2*i+1}")

def silu_fill(F, G, U, tmp, OUT):
    for i in range(0, 16, 2):
        t0, t1 = tmp + (i & 2), tmp + (i & 2) + 1
        F.add(f"v_mul_f32 v{t0}, s41, v{G+i}\nv_mul_f32 v{t1}, s41, v{G+i+1}")
        F.add(f"v_exp_f32 v{t0}, v{t0}\nv_exp_f32 v{t1}, v{t1}")
        F.add(f"v_mul_f32 v{G+i}, v{G+i}, v{U+i}\nv_mul_f32 v{G+i+1}, v{G+i+1}, v{U+i+1}")
        F.add(f"v_add_f32 v{t0}, 1.0, v{t0}\nv_add_f32 v{t1}, 1.0, v{t1}")
        F.add(f"v_rcp_f32 v{t0}, v{t0}\nv_rcp_f32 v{t1}, v{t1}")
        if i >= 2:
            F.add(f"v_cvt_pk_bf16_f32 v{OUT+i//2-1}, v{G+i-2}, v{G+i-1}")
        else:
            F.add("v_nop")
        F.add(f"v_mul_f32 v{G+i}, v{G+i}, v{t0}\nv_mul_f32 v{G+i+1}, v{G+i+1}, v{t1}")
    F.add(f"v_cvt_pk_bf16_f32 v{OUT+7}, v{G+14}, v{G+15}")

def gen_k1(opt):
    p = Prog(); name = "ph1_kernel"
    header(p, name)
    R = 6; PD = 3; NB = 8
    RING, PHI, LWP, KVF = 0, 114688, 98304, 110592
    ZERO = KVF + 3360; DUMMY = ZERO + 80
    SC = opt.get("sc", " sc1")
    ACQ = 16
    AG0 = 80; AG1 = 112
    PP = 144
    PHQ = 192
    TT = 212
    TM = 232
    VS1 = 248
    vL16, vL16b, vDMA, vAFh, vAFo, vAFo2, vW0, vKA0, vKA1, vKB0, vKB1, vKP, vG0, vG1 = range(2, 16)
    vGS1, vKF0, vKF1, vFL, vFLs = 249, 250, 251, 252, 253
    XA = 0; BA = 160
    p.emit("s_cmp_ge_u32 s2, 256\ns_cbranch_scc1 K1_end")
    ST = Stamps(p, opt.get("stamp"), 1); ST("start"); ST("cstart")
    p.emit("s_load_dwordx2 s[20:21], s[0:1], 80")
    ids(p)
    p.emit("v_mov_b32 v254, v2")
    srd(p, 4, 20, WS_N)
    p.emit(f"s_lshl_b32 s22, s61, 8\ns_add_u32 s22, s22, {FLG+128}\ns_add_u32 s24, s20, s22\ns_addc_u32 s25, s21, 0\ns_load_dword s26, s[24:25], 0")
    rot = opt.get("rot", 1)
    if rot:
        p.emit("s_and_b32 s27, s60, 7\ns_cmp_ge_u32 s27, 5\ns_cselect_b32 s28, 5, 0\ns_sub_u32 s27, s27, s28\ns_lshl_b32 s27, s27, 3")
    else:
        p.emit("s_mov_b32 s27, 0")
    for m in range(10):
        p.emit(f"s_add_u32 s{70+m}, s27, {4*m}\ns_cmp_ge_u32 s{70+m}, 40\ns_cselect_b32 s28, 40, 0\ns_sub_u32 s{70+m}, s{70+m}, s28")
    p.emit(f"s_lshl_b32 s29, s60, 2\ns_add_u32 s29, s29, s64\ns_mul_i32 s30, s29, 40960\ns_add_u32 s30, s30, {XF}")
    p.emit(f"s_mul_i32 s31, s61, 409600\ns_add_u32 s31, s31, {B1F}")
    p.emit("s_lshl_b32 s32, s64, 12")
    p.emit(f"v_lshlrev_b32 v{vL16}, 4, v254\nv_add_u32 v{vL16b}, 0x10000, v{vL16}\nv_add_u32 v{vDMA}, s32, v{vL16}")
    def xload(m):
        p.emit(f"s_lshl_b32 s33, s{70+m}, 10\ns_add_u32 s33, s33, s30")
        for e in range(4):
            s = 4*m + e
            p.emit(f"buffer_load_dwordx4 a[{XA+4*s}:{XA+4*s+3}], v{vL16}, s[4:7], s33 offen offset:{1024*e}")
    def dma_setup(t):
        if t < 10: return f"s_lshl_b32 s34, s{70+t}, 12\ns_add_u32 s34, s34, s31\ns_add_u32 m0, s32, {RING + (t % R)*16384}"
        c = (t - 10)//5; m = (t - 10) % 5
        return f"s_lshl_b32 s34, s{70+2*m}, 11\ns_add_u32 s34, s34, s31\ns_add_u32 s34, s34, {163840 + c*81920}\ns_add_u32 m0, s32, {RING + (t % R)*16384}"
    def dma_ins(t, e): return f"buffer_load_dwordx4 v{vDMA}, s[4:7], s34 offen offset:{1024*e} lds"
    for t in range(R):
        p.emit(dma_setup(t))
        for e in range(4): p.emit(dma_ins(t, e), tok=f"D{t}")
        xload(t)
        if t == 1:
            p.emit(f"s_mul_i32 s35, s61, 11264\ns_add_u32 s35, s35, {WPF}\ns_mul_i32 s36, s64, 3072\ns_add_u32 s35, s35, s36\ns_add_u32 m0, s36, {LWP}")
            for e in range(3): p.emit(f"buffer_load_dwordx4 v{vL16}, s[4:7], s35 offen offset:{1024*e} lds", tok="WP")
    n, hh = 232, 233
    p.emit(f"""s_mov_b32 s40, {LOG2E}
s_mov_b32 s41, {NLOG2E}
v_and_b32 v{n}, 31, v254
v_lshrrev_b32 v{hh}, 5, v254
v_lshrrev_b32 v234, 4, v{n}
v_mul_u32_u24 v234, {AFRT}, v234
v_and_b32 v235, 15, v{n}
v_lshl_add_u32 v234, v235, 4, v234
v_lshl_add_u32 v{vAFh}, v{hh}, 9, v234
v_mul_u32_u24 v235, 768, v{hh}
v_add_u32 v{vAFo}, v234, v235
v_lshl_add_u32 v{vAFo2}, v{hh}, 3, v234
v_add_u32 v{vAFo2}, 512, v{vAFo2}
s_lshl_b32 s42, s29, 1
s_mul_i32 s42, s42, {AFRT}
s_add_u32 s42, s42, {AF}
s_lshl_b32 s43, s61, 10
s_add_u32 s43, s43, s42
s_mul_i32 s44, s61, 1280
s_add_u32 s44, s44, s42
s_add_u32 s44, s44, 49152""")
    p.emit(f"""v_and_b32 v234, 3, v{n}
v_lshlrev_b32 v234, 2, v234
v_bfe_u32 v235, v{n}, 2, 2
v_or_b32 v234, v234, v235
v_lshlrev_b32 v235, 2, v{hh}
v_xor_b32 v234, v234, v235
s_lshl_b32 s45, s64, 13
s_add_u32 s45, s45, {PHI}
v_lshlrev_b32 v235, 8, v{n}
v_lshl_add_u32 v234, v234, 4, v235
v_add_u32 v{vW0}, s45, v234""")
    p.emit(f"""s_lshr_b32 s46, s64, 1
s_lshl_b32 s46, s46, 2
s_and_b32 s47, s64, 1
v_bfe_u32 v234, v254, 4, 1
v_and_b32 v235, 3, v254
v_lshl_add_u32 v234, v234, 2, v235
v_bfe_u32 v235, v254, 2, 2
v_lshrrev_b32 v236, 1, v234
v_and_b32 v237, 1, v234
v_and_b32 v238, 2, v236
v_or_b32 v238, v238, v237
v_and_b32 v239, 1, v236
s_cmp_eq_u32 s47, 0
s_cselect_b64 s[48:49], -1, 0
v_add_u32 v240, 8, v236
v_cndmask_b32 v238, v240, v238, s[48:49]
v_cndmask_b32 v239, v237, v239, s[48:49]
v_add_u32 v238, s46, v238
v_add_u32 v240, 1, v236
v_and_b32 v240, 3, v240
v_add3_u32 v240, v240, s46, 8
v_lshlrev_b32 v241, 2, v235
v_lshl_add_u32 v241, v{hh}, 1, v241
v_lshl_add_u32 v242, v{hh}, 3, v235
v_lshlrev_b32 v242, 8, v242
v_add_u32 v242, {PHI}, v242""")
    for rd, (va, vb) in enumerate(((vKA0, vKB0), (vKA1, vKB1))):
        p.emit(f"""v_or_b32 v243, {rd}, v241
v_xor_b32 v244, v238, v243
v_lshlrev_b32 v244, 4, v244
v_lshl_add_u32 v244, v239, 3, v244
v_add3_u32 v{va}, v244, v242, {0}
v_xor_b32 v244, v240, v243
v_lshlrev_b32 v244, 4, v244
v_lshl_add_u32 v244, v237, 3, v244
v_add_u32 v{vb}, v244, v242""")
        if rd: p.emit(f"v_add_u32 v{va}, 1024, v{va}\nv_add_u32 v{vb}, 1024, v{vb}")
    p.emit(f"""v_mul_u32_u24 v234, 21, v{hh}
v_add_u32 v234, v234, v{n}
v_lshlrev_b32 v234, 4, v234
v_mov_b32 v235, {BIG}
v_cmp_gt_u32 vcc, 21, v{n}
v_cndmask_b32 v{vKP}, v235, v234, vcc
v_cndmask_b32 v1, v235, v{vKP}, s[48:49]
s_lshl_b32 s50, s61, 4
s_mul_i32 s51, s50, {KVS}
s_add_u32 s51, s51, {KVP}
s_mul_i32 s52, s60, {KVS}
s_add_u32 s52, s52, s51
s_lshr_b32 s53, s64, 1
s_mul_i32 s53, s53, 3360
s_add_u32 s52, s52, s53
s_mul_i32 s53, s47, 4*672
s_add_u32 s52, s52, s53""")
    p.emit(f"v_lshlrev_b32 v{vFLs}, 4, v0\nv_add_u32 v234, 4096, v{vFLs}\nv_cmp_gt_u32 vcc, 164, v0\nv_cndmask_b32 v{vGS1}, v235, v234, vcc")
    for rnd, vd in enumerate((vG0, vG1)):
        p.emit(f"v_add_u32 v236, {256*rnd}, v0")
        vdiv(p, 237, 236, 210, 511)
        p.emit("v_mul_u32_u24 v238, 210, v237\nv_sub_u32 v238, v236, v238")
        vdiv(p, 239, 238, 42, 209)
        p.emit("v_mul_u32_u24 v240, 42, v239\nv_sub_u32 v240, v238, v240")
        p.emit("v_cmp_lt_u32 vcc, 20, v240\nv_subrev_u32 v241, 21, v240\nv_cndmask_b32 v241, v240, v241, vcc\nv_cndmask_b32 v242, 0, 1, vcc")
        p.emit(f"""v_and_b32 v243, 2, v239
v_add_u32 v243, v243, v242
v_lshlrev_b32 v243, 4, v243
v_and_b32 v244, 1, v239
v_lshl_add_u32 v243, v244, 3, v243
v_lshl_add_u32 v244, v242, 3, 64
v_cmp_eq_u32 vcc, 4, v239
v_cndmask_b32 v243, v243, v244, vcc
v_mul_u32_u24 v237, 1680, v237
v_mul_u32_u24 v241, 80, v241
v_add3_u32 v243, v243, v237, v241
v_add_u32 v243, {KVF}, v243
v_mov_b32 v244, {DUMMY}
v_cmp_gt_u32 vcc, 420, v236
v_cndmask_b32 v{vd}, v244, v243, vcc""")
    p.emit(f"""v_bfe_u32 v234, v{n}, 2, 1
v_lshrrev_b32 v236, 3, v{n}
v_and_b32 v237, 3, v{n}
v_lshl_add_u32 v236, v236, 2, v237
v_mul_u32_u24 v237, 1680, v{hh}
v_mul_u32_u24 v238, 80, v236
v_add3_u32 v237, v237, v238, 0
v_add_u32 v237, {KVF}, v237
v_mov_b32 v238, {ZERO}
v_cmp_eq_u32 vcc, v234, v{hh}
v_cndmask_b32 v{vKF0}, v238, v237, vcc
v_add_u32 v237, 1280, v237
v_cmp_gt_u32 s[54:55], 5, v236
s_and_b64 vcc, vcc, s[54:55]
v_cndmask_b32 v{vKF1}, v238, v237, vcc""")
    p.emit(f"v_mov_b32 v234, 0\nv_lshlrev_b32 v236, 2, v254\nv_min_u32 v236, 76, v236\nv_add_u32 v236, {ZERO}, v236\nds_write_b32 v236, v234", )
    p.emit(f"""s_mul_i32 s26, s26, 0x41c64e6d
s_add_u32 s26, s26, 0x3039
s_lshl_b32 s56, s61, 8
s_add_u32 s56, s56, {FLG}
v_and_b32 v{vFL}, 15, v254
v_lshlrev_b32 v{vFL}, 2, v{vFL}
s_lshl_b32 s57, s60, 2
s_mov_b32 s58, 0
v_mov_b32 v234, s57
v_cmp_eq_u32 vcc, 0, v0
v_cndmask_b32 v255, v235, v234, vcc""")
    seq = []
    for t in range(10):
        for f in range(16):
            s = 4*t + f//4; seq.append((t, f, ACQ + 16*(f % 4), s, s == 0))
    accG = [AG0, AG1, ACQ]
    for c in range(3):
        for m in range(5):
            for f in range(16):
                s = 8*m + f//2; seq.append((10 + 5*c + m, f, accG[c] + 16*(f % 2), s, s == 0))
    NM = len(seq)
    state = {'bars': 0, 'bartoks': [], 'pos': 0}
    def bread(i):
        t, f = seq[i][0], seq[i][1]
        off = RING + (t % R)*16384 + f*1024
        v = vL16 if off < 65536 else vL16b
        b = BA + 4*(i % NB)
        p.emit(f"ds_read_b128 a[{b}:{b+3}], v{v} offset:{off & 0xffff}")
    dmaq = deque()
    def bar(t):
        p.wait_tok(f"D{t}", *state['bartoks']); state['bartoks'] = []
        p.emit("s_barrier"); state['bars'] += 1
        if t < 4: dmaq.append(('x', t + 6))
        if t >= 2 and t - 2 + R < 25:
            for e in range(4): dmaq.append(('d', t - 2 + R, e))
    F = Filler(); F.gap = 4
    def gate_pos(k):
        def chk(): return state['pos'] >= k
        F.q.append(['gate', chk])
    def need_bar(*toks):
        st = {}
        def arm(prog): state['bartoks'] += list(toks); st['n'] = state['bars']
        F.act(arm)
        F.q.append(['gate', lambda: state['bars'] > st['n']])
    def run(budget):
        while F.q and budget > 0:
            x = F.q[0]
            if isinstance(x, list):
                if x[0] == 'gate':
                    if not x[1](): return
                    F.q.popleft(); continue
                if x[1] > 0:
                    x[1] -= 1; return
                F.q.popleft(); continue
            if callable(x):
                F.q.popleft(); x(p); continue
            if not p.ready(x): return
            if x.kind == 'mfma':
                F.q.popleft(); p.emit(x); budget = 5; continue
            if x.cost > budget: return
            F.q.popleft(); p.emit(x); budget -= x.cost
    gate_pos(161)
    F.add("s_nop 0", waits=["WP"])
    BQ = TT
    WB = TM
    fr = [(0,0),(0,1),(0,2),(1,0),(1,1),(1,2),(1,3),(1,4),(2,2),(2,3),(2,4)]
    order = [8,9,10,3,4,5,6,7,0,1,2]
    def wpread(idx): return f"ds_read_b128 v[{WB+4*(idx%3)}:{WB+4*(idx%3)+3}], v{vL16b} offset:{LWP - 65536 + order[idx]*1024}"
    F.add(wpread(0)); F.add(wpread(1)); F.add(wpread(2))
    for i in list(range(8, 20)) + list(range(0, 8)):
        F.add(f"v_cvt_pk_bf16_f32 v{BQ+i}, v{ACQ+2*i}, v{ACQ+2*i+1}")
    seen = set()
    VV = ACQ
    for idx in range(11):
        tp, s = fr[order[idx]]
        c = f"v[{PP+16*tp}:{PP+16*tp+15}]" if tp in seen else "0"
        seen.add(tp)
        F.add(f"v_mfma_f32_32x32x16_bf16 v[{PP+16*tp}:{PP+16*tp+15}], v[{WB+4*(idx%3)}:{WB+4*(idx%3)+3}], v[{BQ+4*s}:{BQ+4*s+3}], {c}")
        if idx + 3 < 11: F.add(wpread(idx + 3))
        if idx < 10: F.add(f"v_cvt_pk_bf16_f32 v{VV+idx}, v{ACQ+40+2*idx}, v{ACQ+41+2*idx}")
    F.add(f"v_mov_b32 v{VV+10}, 0x3f80\nv_mov_b32 v{VV+11}, 0")
    for e in range(3):
        F.add(f"v_xor_b32 v{TM+12+e}, {(9+e)<<4}, v{vW0}\nds_write_b128 v{TM+12+e}, v[{VV+4*e}:{VV+4*e+3}]", tok="PH")
    PK = ACQ + 12
    softmax_fill(F, PP + 20, TT, False, PK, None, TM)
    for e in range(5):
        F.add(f"v_xor_b32 v{TM+8+e}, {(e if e < 4 else 8)<<4}, v{vW0}\nds_write_b128 v{TM+8+e}, v[{PK+4*e}:{PK+4*e+3}]", tok="PH")
    st_bar = {}
    def arm(prog):
        assert state['pos'] < 318, state['pos']
        print("PH writes done at pos", state['pos'], file=sys.stderr)
        state['bartoks'] += ["PH"]; st_bar['n'] = state['bars']
    F.act(arm)
    softmax_fill(F, PP, TT, True, PHQ, VS1, TM)
    F.q.append(['gate', lambda: state['bars'] > st_bar['n']])
    KD = ACQ + 32
    def kvread(ks):
        b = PP + 8*(ks % 4)
        return (f"ds_read_b64_tr_b16 v[{b}:{b+1}], v{vKA0} offset:{ks*4096}\nds_read_b64_tr_b16 v[{b+2}:{b+3}], v{vKA1} offset:{ks*4096}\n"
                f"ds_read_b64_tr_b16 v[{b+4}:{b+5}], v{vKB0} offset:{ks*4096}\nds_read_b64_tr_b16 v[{b+6}:{b+7}], v{vKB1} offset:{ks*4096}")
    for ks in range(3): F.add(kvread(ks))
    F.delay(1)
    for ks in range(8):
        b = PP + 8*(ks % 4)
        F.add(f"v_mfma_f32_32x32x16_bf16 v[{KD}:{KD+15}], v[{b}:{b+3}], v[{b+4}:{b+7}], {'0' if ks == 0 else f'v[{KD}:{KD+15}]'}")
        if ks + 3 < 8: F.add(kvread(ks + 3))
    gate_pos(241)
    HO = TT
    silu_fill(F, AG0, AG0 + 16, TM, HO)
    F.add(f"buffer_store_dwordx4 v[{KD}:{KD+3}], v{vKP}, s[4:7], s52 offen sc1", tok="KP")
    for e in range(1, 4):
        F.add(f"buffer_store_dwordx4 v[{KD+4*e}:{KD+4*e+3}], v1, s[4:7], s52 offen offset:{672*e} sc1", tok="KP")
    for u in range(2):
        F.add(f"buffer_store_dwordx4 v[{HO+4*u}:{HO+4*u+3}], v{vAFh}, s[4:7], s43 offen offset:{256*u}{SC}")
    F.act(lambda prog: print("kv publish at pos", state['pos'], file=sys.stderr))
    F.delay(opt.get("pubdelay", 14))
    need_bar("KP")
    F.add(f"v_mov_b32 v{TM}, s26\nbuffer_store_dword v{TM}, v255, s[4:7], s56 offen sc1")
    F.act(lambda prog: print("flag at pos", state['pos'], file=sys.stderr))
    gate_pos(321)
    silu_fill(F, AG1, AG1 + 16, TM, HO)
    F.add("s_add_u32 s43, s43, 16384")
    for u in range(2):
        F.add(f"buffer_store_dwordx4 v[{HO+4*u}:{HO+4*u+3}], v{vAFh}, s[4:7], s43 offen offset:{256*u}{SC}")
    F.add(f"buffer_load_dword v{TM+8}, v{vFL}, s[4:7], s56 offen sc1")
    F.delay(opt.get("polldelay", 16))
    def poll(prog):
        print("poll at pos", state['pos'], file=sys.stderr)
        prog.emit(f"v_cmp_ne_u32 vcc, s26, v{TM+8}")
        prog.emit("s_cbranch_vccnz K1_slow")
        prog.raw("K1_back:")
    F.act(poll)
    GB = AG0
    acc0, acc1 = TT + 8, TT + 12
    NG = 28
    loads = [(g2, rnd) for g2 in range(16) for rnd in range(2)]
    def gload(i):
        g2, rnd = loads[i]; b = GB + 4*(i % NG)
        s = ""
        if rnd == 0 and g2 > 0: s += f"s_add_u32 s51, s51, {KVS}\n"
        return s + f"buffer_load_dwordx4 v[{b}:{b+3}], v{vFLs if rnd == 0 else vGS1}, s[4:7], s51 offen sc1"
    for i in range(NG): F.add(gload(i))
    F.delay(opt.get("gdelay", 10))
    for i in range(32):
        g2, rnd = loads[i]; b = GB + 4*(i % NG); a = acc0 if rnd == 0 else acc1
        if g2 == 0: continue
        for e in range(4):
            src = f"v{GB + 4*rnd + e}" if g2 == 1 else f"v{a+e}"
            F.add(f"v_add_f32 v{a+e}, {src}, v{b+e}")
        if g2 == 1 and rnd == 1:
            for k in range(NG, 32): F.add(gload(k))
    for rnd, (a, vd) in enumerate(((acc0, vG0), (acc1, vG1))):
        F.add(f"v_cvt_pk_bf16_f32 v{a}, v{a}, v{a+1}\nv_cvt_pk_bf16_f32 v{a+1}, v{a+2}, v{a+3}\nds_write_b64 v{vd}, v[{a}:{a+1}]", tok="KF")
    ST("prebar0")
    bar(0)
    ST("bar0")
    for i in range(PD): bread(i)
    for i in range(NM):
        t, f, acc, s, first = seq[i]
        b = BA + 4*(i % NB)
        p.emit(f"v_mfma_f32_32x32x16_bf16 v[{acc}:{acc+15}], a[{b}:{b+3}], a[{XA+4*s}:{XA+4*s+3}], {'0' if first else f'v[{acc}:{acc+15}]'}")
        state['pos'] = i + 1
        if i + 1 in (160, 240, 320, 400): ST(f"m{i+1}")
        budget = 5
        if i + PD < NM:
            if seq[i + PD][1] == 0: bar(seq[i + PD][0])
            bread(i + PD)
        if dmaq and (i % 2 == 0):
            x = dmaq.popleft()
            if x[0] == 'x': xload(x[1]); budget -= 4
            else:
                if x[2] == 0: p.emit(dma_setup(x[1]))
                p.emit(dma_ins(x[1], x[2]), tok=f"D{x[1]}"); budget -= 1
        run(budget)
    left = F.cost()
    state['pos'] = 10**6
    while F.q:
        x = F.q[0]
        if isinstance(x, list):
            if x[0] == 'gate' and not x[1]():
                p.wait_tok(*state['bartoks']); state['bartoks'] = []; p.emit("s_barrier"); state['bars'] += 1
            F.q.popleft(); continue
        F.q.popleft()
        if callable(x): x(p)
        else: p.emit(x)
    ST("drained")
    p.wait_tok("KF"); p.emit("s_barrier")
    KB = AG0
    for tp in range(2):
        for s in range(5):
            b = KB + 4*(5*tp + s)
            p.emit(f"ds_read_b128 v[{b}:{b+3}], v{vKF0 if tp == 0 else vKF1} offset:{16*s}")
    T2 = Filler()
    silu_fill(T2, ACQ, ACQ + 16, TM, HO)
    T2.add("s_add_u32 s43, s43, 16384")
    for u in range(2):
        T2.add(f"buffer_store_dwordx4 v[{HO+4*u}:{HO+4*u+3}], v{vAFh}, s[4:7], s43 offen offset:{256*u}{SC}")
    OD = PP
    T2.run(p, 12)
    for s in range(5):
        for tp in (1, 0):
            b = KB + 4*(5*tp + s); d = OD + 16*tp
            p.emit(f"v_mfma_f32_32x32x16_bf16 v[{d}:{d+15}], v[{b}:{b+3}], v[{PHQ+4*s}:{PHQ+4*s+3}], {'0' if s == 0 else f'v[{d}:{d+15}]'}")
            T2.run(p, 6)
    T2.drain(p)
    p.emit(f"v_add_f32 v{TM}, v{OD+20}, v{VS1}\nv_rcp_f32 v{TM}, v{TM}")
    for i in range(20): p.emit(f"v_mul_f32 v{OD+i}, v{OD+i}, v{TM}")
    for i in range(10): p.emit(f"v_cvt_pk_bf16_f32 v{PHQ+i}, v{OD+2*i}, v{OD+2*i+1}")
    p.emit(f"buffer_store_dwordx4 v[{PHQ}:{PHQ+3}], v{vAFo}, s[4:7], s44 offen{SC}")
    p.emit(f"buffer_store_dwordx4 v[{PHQ+4}:{PHQ+7}], v{vAFo}, s[4:7], s44 offen offset:256{SC}")
    p.emit(f"buffer_store_dwordx2 v[{PHQ+8}:{PHQ+9}], v{vAFo2}, s[4:7], s44 offen{SC}")
    ST("end"); ST("cend"); ST.flush(4, 240)
    p.emit(f"s_cmp_lg_u32 s60, 0\ns_cbranch_scc1 K1_end\nv_mov_b32 v{TM}, s26\nbuffer_store_dword v{TM}, v255, s[4:7], s56 offen offset:128")
    p.raw("K1_end:")
    p.emit("s_endpgm")
    p.raw("K1_slow:")
    p.raw(f"buffer_load_dword v{TM+8}, v{vFL}, s[4:7], s56 offen sc1")
    p.raw("s_waitcnt vmcnt(0)")
    p.raw(f"v_cmp_ne_u32 vcc, s26, v{TM+8}")
    p.raw("s_nop 1")
    p.raw("s_cbranch_vccz K1_back")
    p.raw("s_sleep 1")
    p.raw("s_add_u32 s58, s58, 1")
    p.raw("s_cmp_lt_u32 s58, 0x8000")
    p.raw("s_cbranch_scc1 K1_slow")
    p.raw("s_branch K1_back")
    print(f"K1: filler left at end {left}, nops {p.stats['nop']}, instrs {len(p.out)}", file=sys.stderr)
    return name, p, kd(name, 512, 256), (256, 256, 147456)

def gen_k2(opt):
    p = Prog(); name = "ph2_kernel"
    header(p, name)
    NBUF = opt.get("nbuf", 6)
    ACC = 16
    p.emit("s_cmp_ge_u32 s2, 256\ns_cbranch_scc1 K2_end")
    ST = Stamps(p, opt.get("stamp"), 2); ST("start"); ST("cstart")
    p.emit("s_load_dwordx2 s[20:21], s[0:1], 80\ns_load_dwordx2 s[22:23], s[0:1], 0\ns_load_dwordx2 s[24:25], s[0:1], 64")
    ids(p)
    srd(p, 4, 20, WS_N)
    p.emit(f"v_lshlrev_b32 v3, 4, v2\nv_add_u32 v4, {AFRT}, v3\nv_add_u32 v5, {2*AFRT}, v3\nv_add_u32 v6, {3*AFRT}, v3\nv_add_u32 v7, 4096, v3")
    p.emit(f"""s_mul_i32 s30, s62, {4*AFRT}
s_add_u32 s30, s30, {AF}
s_mul_i32 s31, s63, 348160
s_add_u32 s31, s31, {B2F}
s_lshl_b32 s32, s64, 2
s_mul_i32 s33, s64, 5""")
    kss = [(32, 16*c + e) for c in range(3) for e in range(4)] + [(33, 48 + e) for e in range(5)]
    def loads(i):
        sr, k0 = kss[i]; b = 36*(i % NBUF)
        p.emit(f"s_add_u32 s34, s{sr}, {k0}\ns_lshl_b32 s35, s34, 10\ns_add_u32 s35, s35, s30\ns_mul_i32 s36, s34, 5120\ns_add_u32 s36, s36, s31")
        for t in range(5):
            p.emit(f"buffer_load_dwordx4 a[{b+16+4*t}:{b+19+4*t}], v{3 if t < 4 else 7}, s[4:7], s36 offen offset:{1024*t if t < 4 else 0}")
            if t < 4: p.emit(f"buffer_load_dwordx4 a[{b+4*t}:{b+4*t+3}], v{3+t}, s[4:7], s35 offen")
    for i in range(NBUF): loads(i)
    srd(p, 8, 22, 2048*1280); srd(p, 12, 24, 2048*1280)
    p.emit("""s_lshl_b32 s37, s62, 6
s_lshl_b32 s38, s64, 4
s_add_u32 s37, s37, s38
s_mul_i32 s37, s37, 1280
s_mul_i32 s38, s63, 160
s_add_u32 s37, s37, s38
v_and_b32 v8, 15, v2
v_mul_u32_u24 v8, 1280, v8
v_lshrrev_b32 v9, 4, v2
v_mul_u32_u24 v9, 40, v9
v_add_u32 v8, v8, v9""")
    XR = 100
    for i in range(17):
        b = 36*(i % NBUF)
        for rt in range(4):
            for t in range(5):
                d = ACC + 20*rt + 4*t
                p.emit(f"v_mfma_f32_16x16x32_bf16 v[{d}:{d+3}], a[{b+16+4*t}:{b+19+4*t}], a[{b+4*rt}:{b+4*rt+3}], {'0' if i == 0 else f'v[{d}:{d+3}]'}")
        if i in (0, 3, 7, 11, 16): ST(f"k{i}")
        if i + NBUF < 17: loads(i + NBUF)
        if i + NBUF == 17:
            p.emit(f"buffer_load_dwordx4 v[{XR}:{XR+3}], v8, s[8:11], s37 offen\nbuffer_load_dwordx4 v[{XR+4}:{XR+7}], v8, s[8:11], s37 offen offset:16\nbuffer_load_dwordx2 v[{XR+8}:{XR+9}], v8, s[8:11], s37 offen offset:32")
    RD = 112
    p.emit("s_nop 7")
    for w in range(4):
        p.emit(f"s_cmp_lg_u32 s64, {w}\ns_cbranch_scc1 K2_w{w}")
        sv = (deque(p.vm), deque(p.lg))
        for k in range(1, 4):
            rt = (w + k) & 3
            for t in range(5):
                d = ACC + 20*rt + 4*t
                p.emit(f"ds_write_b128 v3, v[{d}:{d+3}] offset:{(rt*3 + k-1)*5120 + t*1024}")
        if w != 0:
            for r in range(20): p.emit(f"v_mov_b32 v{ACC+r}, v{ACC+20*w+r}")
        p.emit("s_waitcnt lgkmcnt(0)")
        p.raw(f"K2_w{w}:")
        p.vm, p.lg = sv
    p.emit("s_barrier")
    p.emit("s_mul_i32 s38, s64, 15360\nv_add_u32 v9, s38, v3")
    for k in range(3):
        for t in range(5):
            b = RD + 20*k + 4*t
            p.emit(f"ds_read_b128 v[{b}:{b+3}], v9 offset:{k*5120 + t*1024}")
    XU = 176
    for d in range(10):
        p.emit(f"v_lshlrev_b32 v{XU+2*d}, 16, v{XR+d}\nv_and_b32 v{XU+2*d+1}, 0xffff0000, v{XR+d}")
    for r in range(20): p.emit(f"v_add_f32 v{ACC+r}, v{ACC+r}, v{XU+r}")
    for k in range(3):
        for r in range(20): p.emit(f"v_add_f32 v{ACC+r}, v{ACC+r}, v{RD+20*k+r}")
    for d in range(10): p.emit(f"v_cvt_pk_bf16_f32 v{XR+d}, v{ACC+2*d}, v{ACC+2*d+1}")
    p.emit(f"buffer_store_dwordx4 v[{XR}:{XR+3}], v8, s[12:15], s37 offen\nbuffer_store_dwordx4 v[{XR+4}:{XR+7}], v8, s[12:15], s37 offen offset:16\nbuffer_store_dwordx2 v[{XR+8}:{XR+9}], v8, s[12:15], s37 offen offset:32")
    ST("end"); ST("cend"); ST.flush(4, 240)
    p.raw("K2_end:")
    p.emit("s_endpgm")
    print(f"K2: nops {p.stats['nop']}, instrs {len(p.out)}", file=sys.stderr)
    return name, p, kd(name, 512, 256), (256, 256, 61440)

HEAD = open("cdna_kernels/" + NAME + ".s.ref").read().split("; Override launch")[0]
def build(opt={}):
    ks = [gen_k0(opt), gen_k1(opt), gen_k2(opt)]
    s = HEAD
    for name, p, k, (g, b, lds) in ks:
        s += f"; @launch kernel={name} grid=({g},1,1) block=({b},1,1) lds={lds}\n"
    s += '.amdgcn_target "amdgcn-amd-amdhsa--gfx950"\n.text\n'
    for name, p, k, _ in ks: s += p.text()
    s += '.section .rodata,"a"\n'
    for name, p, k, _ in ks: s += ".p2align 6\n" + k
    return s
if __name__ == "__main__":
    out = sys.argv[1] if len(sys.argv) > 1 else "cdna_kernels/" + NAME + ".s"
    opt = eval(sys.argv[2]) if len(sys.argv) > 2 else {}
    open(out, "w").write(build(opt))
```

```python
import re
from collections import deque

REG_RE = re.compile(r'(?<![\w.])([vas])(\d+)(?![\w\[])|(?<![\w.])([vas])\[(\d+):(\d+)\]|(?<![\w.])(vcc|exec|m0|scc)(?![\w])')

def regs_of(s):
    out = []
    for m in REG_RE.finditer(s):
        if m.group(1):
            out.append(m.group(1) + m.group(2))
        elif m.group(3):
            out += [m.group(3) + str(i) for i in range(int(m.group(4)), int(m.group(5)) + 1)]
        else:
            out.append(m.group(6))
    return out

def split_ops(s):
    ops = []; depth = 0; cur = ''
    for ch in s:
        if ch in '[(': depth += 1
        if ch in '])': depth -= 1
        if ch == ',' and depth == 0:
            ops.append(cur.strip()); cur = ''
        else:
            cur += ch
    if cur.strip(): ops.append(cur.strip())
    return ops

TRANS = ('v_exp_f32', 'v_log_f32', 'v_rcp_f32', 'v_rsq_f32', 'v_sqrt_f32', 'v_sin_f32', 'v_cos_f32', 'v_rcp_iflag_f32')
SCC_W = ('s_add_u32','s_addc_u32','s_sub_u32','s_subb_u32','s_add_i32','s_sub_i32','s_lshl_b32','s_lshr_b32','s_lshl_b64','s_lshr_b64','s_ashr_i32',
         's_and_b32','s_and_b64','s_or_b32','s_or_b64','s_xor_b32','s_xor_b64','s_andn2_b64','s_andn2_b32','s_not_b32','s_min_u32','s_max_u32','s_addk_i32',
         's_and_saveexec_b64','s_or_saveexec_b64','s_bfe_u32','s_lshl1_add_u32','s_lshl2_add_u32','s_lshl3_add_u32','s_lshl4_add_u32')

class I:
    __slots__ = ('text','op','kind','r','w','tok','waits','cost','mf','note','srcA','srcC','dst','wide','lat')
    def __init__(self, text, tok=None, waits=None, lat=None):
        self.text = text.strip(); self.tok = tok; self.waits = waits or []; self.note = ''
        t = self.text
        m = re.match(r'(\S+)\s*(.*)', t)
        op = m.group(1); rest = m.group(2)
        self.op = op
        for sfx in ('_e32','_e64','_dpp'):
            if op.endswith(sfx): op = op[:-len(sfx)]
        ops = split_ops(rest)
        r = []; w = []; kind = None; self.mf = 0; self.srcA = []; self.srcC = []; self.dst = []; self.wide = False
        R = lambda k: regs_of(ops[k]) if k < len(ops) else []
        allr = lambda k: [x for o in ops[k:] for x in regs_of(o)]
        if t.endswith(':'):
            kind = 'label'
        elif op.startswith('.') or op.startswith(';'):
            kind = 'dir'
        elif op.startswith('v_mfma'):
            kind = 'mfma'; self.mf = 8 if '32x32x16' in op else 4
            assert '32x32x16' in op or '16x16x32' in op
            w = R(0); self.srcA = R(1) + R(2); self.srcC = R(3); r = self.srcA + self.srcC + ['exec']
        elif op.startswith('v_cmp'):
            kind = 'valu'; w = R(0); r = allr(1) + ['exec']
        elif op in ('v_readfirstlane_b32','v_readlane_b32'):
            kind = 'valu'; w = R(0); r = allr(1) + ['exec']
        elif op.startswith('v_permlane') and 'swap' in op:
            kind = 'valu'; w = R(0) + R(1); r = R(0) + R(1) + ['exec']
        elif op.startswith('v_'):
            kind = 'trans' if op in TRANS else 'valu'
            w = R(0); r = allr(1) + ['exec']
            if op in ('v_fmac_f32','v_dot2c_f32_bf16','v_writelane_b32','v_pk_fmac_f16') or 'row_' in t or 'quad_perm' in t:
                r += R(0)
            if op in ('v_add_co_u32','v_sub_co_u32','v_addc_co_u32','v_subb_co_u32'):
                w += R(1); r = allr(2) + ['exec']
            if op == 'v_nop': kind = 'nop'
        elif op.startswith('ds_read') or op.startswith('ds_bpermute') or op.startswith('ds_swizzle'):
            kind = 'dsr'; w = R(0); r = allr(1) + ['exec']
        elif op.startswith('ds_write'):
            kind = 'dsw'; r = allr(0) + ['exec']
            if 'addtid' in op: r.append('m0')
        elif op.startswith('buffer_load') or op.startswith('global_load'):
            if re.search(r'\blds\b', rest) or '_lds_' in op:
                kind = 'dma'; r = allr(0) + ['m0','exec']
            else:
                kind = 'vld'; w = R(0); r = allr(1) + ['exec']
        elif op.startswith('buffer_store') or op.startswith('global_store') or op.startswith('buffer_atomic') or op.startswith('global_atomic'):
            kind = 'vst'; r = allr(0) + ['exec']
            self.wide = ('x3' in op or 'x4' in op)
            self.dst = R(0) if op.startswith('buffer') else R(1)
        elif op in ('buffer_wbl2','buffer_inv'):
            kind = 'vst'
        elif op.startswith('s_load') or op.startswith('s_buffer_load') or op in ('s_memtime','s_memrealtime'):
            kind = 'smem'; w = R(0); r = allr(1)
        elif op == 's_waitcnt': kind = 'wait'
        elif op == 's_barrier': kind = 'barrier'
        elif op == 's_nop': kind = 'nop'
        elif op in ('s_endpgm','s_branch','s_setprio','s_sleep','s_setpc_b64'):
            kind = 'ctl'; r = allr(0)
        elif op.startswith('s_cbranch'):
            kind = 'ctl'; r = ['scc'] if 'scc' in op else (['vcc'] if 'vcc' in op else ['exec'])
        elif op.startswith('s_cmp') or op.startswith('s_bitcmp'):
            kind = 'salu'; r = allr(0); w = ['scc']
        elif op.startswith('s_'):
            kind = 'salu'; w = R(0); r = allr(1)
            if op in SCC_W: w.append('scc')
            if op in ('s_addc_u32','s_subb_u32','s_cselect_b32','s_cselect_b64','s_cmov_b32'): r.append('scc')
            if 'saveexec' in op: w.append('exec'); r.append('exec')
            if op in ('s_addk_i32','s_mulk_i32','s_cmov_b32'): r += R(0)
        else:
            raise ValueError('unknown instr: ' + t)
        self.kind = kind; self.r = set(r); self.w = set(w)
        self.cost = {'trans': 2, 'valu': 1, 'dsr': 1, 'dsw': 1, 'vld': 3, 'vst': 3, 'dma': 3, 'mfma': 0, 'salu': 0.5, 'nop': 1}.get(kind, 0)
        self.lat = lat
    def states(self):
        if self.kind in ('label','dir'): return 0
        if self.op == 's_nop': return int(self.text.split()[1], 0) + 1
        return 1
    def __repr__(self): return self.text

def is_valu(i): return i.kind in ('valu','trans')
def vregs(s): return {x for x in s if x[0] in 'va' and x not in ('vcc',)}
def sregs(s): return {x for x in s if (x[0] == 's' and x != 'scc') or x == 'vcc'}

def needed_states(hist, n):
    need = 0; dist = 0
    nv_r = vregs(n.r); nv_w = vregs(n.w); ns_r = sregs(n.r)
    for p in reversed(hist):
        if dist >= 20: break
        req = 0
        if p.kind == 'mfma':
            D = p.w; big = p.mf == 8
            if n.kind == 'mfma':
                if D & set(n.srcA): req = max(req, 12 if big else 8)
                c = set(n.srcC)
                if D & c:
                    if not (D == c and p.mf == n.mf): req = max(req, 10 if big else 6)
                elif D & n.w: req = max(req, 10 if big else 6)
            elif is_valu(n) or n.kind in ('dsr','dsw','vld','vst','dma'):
                if D & (nv_r | nv_w): req = max(req, 12 if big else 8)
            if is_valu(n) and (set(p.srcC) & nv_w): req = max(req, 7 if big else 3)
            if n.kind in ('dsr','vld') and (set(p.srcC) & nv_w): req = max(req, 7 if big else 3)
        elif is_valu(p):
            pv = vregs(p.w); ps = sregs(p.w)
            if p.op.startswith('v_dot') and n.op != p.op and (pv & (nv_r | nv_w)): req = max(req, 3)
            if n.kind == 'mfma' and (pv & nv_r): req = max(req, 2)
            if n.kind == 'mfma' and 'exec' in p.w: req = max(req, 4)
            if is_valu(n):
                if p.kind == 'trans' and n.kind != 'trans' and (pv & (nv_r|nv_w)): req = max(req, 1)
                if p.kind == 'trans' and n.kind == 'trans' and (pv & nv_r): req = max(req, 1)
                if n.op.startswith('v_permlane') and (pv & nv_r): req = max(req, 2)
                if ('row_' in n.text or 'quad_perm' in n.text) and (pv & nv_r): req = max(req, 2)
                if n.op.startswith('v_readfirstlane') or n.op.startswith('v_readlane'):
                    if pv & nv_r: req = max(req, 1)
                    if ps & ns_r: req = max(req, 4)
                if ps & ns_r: req = max(req, 2)
            if p.kind == 'trans' and n.kind in ('dsw','vst','dsr','vld','dma') and (pv & nv_r): req = max(req, 1)
            if n.kind in ('vld','vst','dma') and (ps & ns_r): req = max(req, 5)
            if n.kind in ('salu','ctl') and (ps & (ns_r | set(n.r))): req = max(req, 1)
        elif p.kind == 'salu':
            if 'm0' in p.w and (n.kind == 'dma' or 'addtid' in n.op): req = max(req, 1)
        elif p.kind == 'vst' and p.wide:
            if set(p.dst) & nv_w: req = max(req, 2 if is_valu(n) else 1)
        need = max(need, req - dist)
        dist += p.states()
    return need

class Prog:
    def __init__(self):
        self.out = []
        self.vm = deque()
        self.lg = deque()
        self.smem = set()
        self.nsm = 0
        self.auto = True
        self.stats = {'nop': 0}
    def raw(self, text):
        self.out.append(I(text))
    def _wait(self, vm=None, lg=None):
        parts = []
        if vm is not None:
            vm = min(vm, 63)
            if vm < len(self.vm):
                parts.append(f'vmcnt({vm})')
                while len(self.vm) > vm: self.vm.popleft()
        if lg is not None:
            if self.nsm: lg = 0
            lg = min(lg, 15)
            if lg < len(self.lg) or (lg == 0 and self.nsm):
                parts.append(f'lgkmcnt({lg})')
                while len(self.lg) > lg: self.lg.popleft()
                if lg == 0: self.smem = set(); self.nsm = 0
        if parts:
            self.out.append(I('s_waitcnt ' + ' '.join(parts)))
    def pending(self, n):
        touch = n.r | n.w
        vm = None; lg = None
        for idx, (dst, tok) in enumerate(self.vm):
            if (dst & touch) or (tok is not None and tok in n.waits): vm = len(self.vm) - idx - 1
        for idx, (dst, tok) in enumerate(self.lg):
            if (dst & touch) or (tok is not None and tok in n.waits): lg = len(self.lg) - idx - 1
        if self.smem & touch: lg = 0
        return vm, lg
    def emit(self, x, tok=None, waits=None):
        if isinstance(x, str):
            lines = [l for l in x.strip().split('\n') if l.strip()]
            if len(lines) > 1:
                assert tok is None and waits is None
                for l in lines: self.emit(l)
                return
            x = I(lines[0], tok, waits)
        n = x
        if n.kind == 'wait':
            m = re.search(r'vmcnt\((\d+)\)', n.text)
            if m:
                while len(self.vm) > int(m.group(1)): self.vm.popleft()
            m = re.search(r'lgkmcnt\((\d+)\)', n.text)
            if m:
                k = int(m.group(1))
                while len(self.lg) > k: self.lg.popleft()
                if k == 0: self.smem = set(); self.nsm = 0
            self.out.append(n); return
        vm, lg = self.pending(n)
        self._wait(vm, lg)
        if n.kind in ('vld','vst','dma') and len(self.vm) >= 63:
            self._wait(vm=62)
        if n.kind in ('dsr','dsw') and len(self.lg) >= 15:
            self._wait(lg=13)
        k = needed_states(self.out[-24:], n)
        while k > 0:
            c = min(k, 16); self.out.append(I(f's_nop {c-1}')); self.stats['nop'] += c; k -= c
        self.out.append(n)
        if n.kind == 'vld': self.vm.append((set(n.w), n.tok))
        elif n.kind in ('vst','dma'): self.vm.append((set(), n.tok))
        elif n.kind == 'dsr': self.lg.append((set(n.w), n.tok))
        elif n.kind == 'dsw': self.lg.append((set(), n.tok))
        elif n.kind == 'smem': self.smem |= n.w; self.nsm += 1
    def wait_tok(self, *toks):
        vm = None; lg = None
        for idx, (dst, tok) in enumerate(self.vm):
            if tok in toks: vm = len(self.vm) - idx - 1
        for idx, (dst, tok) in enumerate(self.lg):
            if tok in toks: lg = len(self.lg) - idx - 1
        self._wait(vm, lg)
    def wait_regs(self, regs):
        regs = set(regs); vm = None; lg = None
        for idx, (dst, tok) in enumerate(self.vm):
            if dst & regs: vm = len(self.vm) - idx - 1
        for idx, (dst, tok) in enumerate(self.lg):
            if dst & regs: lg = len(self.lg) - idx - 1
        self._wait(vm, lg)
    def snapshot(self): return (deque(self.vm), deque(self.lg), set(self.smem), self.nsm)
    def restore(self, sn): self.vm, self.lg, self.smem, self.nsm = deque(sn[0]), deque(sn[1]), set(sn[2]), sn[3]
    def join(self, sn, nmin, tok):
        self.restore(sn); self.lg = deque(); self.smem = set(); self.nsm = 0
        for _ in range(nmin): self.vm.append((set(), tok))
    def cost_since(self, k):
        c = 0
        for i in self.out[k:]:
            if i.kind in ('label', 'dir', 'mfma'): continue
            if i.kind == 'trans': c += 2
            elif i.kind in ('vld', 'vst', 'dma'): c += 3
            elif i.kind == 'salu': c += 0.5
            elif i.kind == 'nop': c += max(1, i.states() * 0.5)
            else: c += 1
        return c
    def wait_all(self, vm=True, lg=True):
        self._wait(0 if vm else None, 0 if lg else None)
    def ready(self, n, slack=0):
        return needed_states(self.out[-24:], n) <= slack
    def text(self):
        L = []
        for i in self.out:
            L.append(i.text if i.kind in ('label','dir') else '    ' + i.text)
        return '\n'.join(L) + '\n'

class Filler:
    def __init__(self): self.q = deque()
    def add(self, text, tok=None, waits=None):
        for l in text.strip().split('\n'):
            if l.strip(): self.q.append(I(l, tok, waits))
    def act(self, fn): self.q.append(fn)
    def delay(self, n): self.q.append(['delay', n])
    def __len__(self): return len(self.q)
    def cost(self): return sum(x.cost for x in self.q if isinstance(x, I))
    def run(self, prog, budget):
        while self.q and budget > 0:
            x = self.q[0]
            if isinstance(x, list):
                if x[1] > 0:
                    x[1] -= 1; return
                self.q.popleft(); continue
            if callable(x):
                self.q.popleft(); x(prog); continue
            if x.kind == 'mfma':
                if not prog.ready(x): return
                self.q.popleft(); prog.emit(x); budget = getattr(self, 'gap', 4); continue
            if x.cost > budget and budget < 2 and x.cost == 2: return
            if not prog.ready(x): return
            self.q.popleft(); prog.emit(x); budget -= x.cost
    def drain(self, prog):
        while self.q:
            x = self.q.popleft()
            if isinstance(x, list): continue
            if callable(x): x(prog)
            else: prog.emit(x)
```

```python
import sys
from asmdsl import *

NAME = "parallel_sum__linear_kernel_hedgehog__glu_gated_swiglu__prompt"
B1F  = 0x000000
B1J  = 245760
WPF  = 0x400000
CSP  = 0x420000
STA  = 0x480000
B2F  = 0x500000
AF   = 0x800000
KVP  = 0x1100000
FLG  = 0x1300000
STAMP = 0x1C00000
WS_N = 0x2000000
BIG  = 0x40000000
AFRT = 68 * 1024
KVS  = 6784
LOG2E = 0x3fb8aa3b
NLOG2E = 0xbfb8aa3b
F_S0, F_S0B, F_S1, F_H1, F_H2, F_O = [k * 8192 for k in range(6)]
EPOCH = FLG + 0x10000
L_WP = 0; L_CS = 6144; L_CSZ = L_CS + 1280; L_KVF = 7680; L_KVZ = L_KVF + 3360; L_DUM = L_KVZ + 80
RING = 12288; R = 5
XS = RING + R * 16384
PHI = XS
L_SQ = RING + 3 * 16384; L_S1 = L_SQ + 10240; L_S3 = L_S1 + 10240; L_SD = L_S3 + 10240
L_B2 = XS + 49152
LDS_N = L_B2 + 16384

def srd(p, d, base, nbytes):
    p.emit(f"s_mov_b32 s{d}, s{base}\ns_and_b32 s{d+1}, s{base+1}, 0xffff\ns_mov_b32 s{d+2}, {nbytes}\ns_mov_b32 s{d+3}, 0x20000")
def divmagic(n, maxv):
    for sh in (8, 10, 12, 16, 18, 20):
        m = (1 << sh) // n + 1
        if all((v * m) >> sh == v // n for v in range(maxv + 1)) and maxv * m < (1 << 32) and m < (1 << 24): return m, sh
    raise ValueError
def vdiv(dst, src, n, maxv):
    m, sh = divmagic(n, maxv)
    return f"v_mul_u32_u24 v{dst}, {m}, v{src}\nv_lshrrev_b32 v{dst}, {sh}, v{dst}"
def header(p, name):
    p.raw(f".globl {name}"); p.raw(".p2align 8"); p.raw(f".type {name},@function"); p.raw(f"{name}:")
def kd(name, vgpr, accum):
    return f""".amdhsa_kernel {name}
  .amdhsa_next_free_vgpr {vgpr}
  .amdhsa_next_free_sgpr 102
  .amdhsa_accum_offset {accum}
  .amdhsa_group_segment_fixed_size 0
  .amdhsa_kernarg_size 88
  .amdhsa_user_sgpr_count 2
  .amdhsa_user_sgpr_kernarg_segment_ptr 1
  .amdhsa_system_sgpr_workgroup_id_x 1
  .amdhsa_float_denorm_mode_32 3
.end_amdhsa_kernel
"""
class Stamps:
    def __init__(self, p, on, kidx, regs): self.p = p; self.on = on; self.n = 0; self.k = kidx; self.regs = regs; self.names = []
    def __call__(self, name):
        if not self.on or self.n >= len(self.regs): return
        r = self.regs[self.n]; self.n += 1; self.names.append(name)
        self.p.emit(f"s_memrealtime s[{r}:{r+1}]" if self.on != 2 else f"s_memtime s[{r}:{r+1}]")
    def flush(self, srd, vt):
        if not self.on: return
        p = self.p
        p.emit("s_waitcnt lgkmcnt(0)")
        p.emit(f"s_lshl_b32 s3, s2, 8\ns_add_u32 s3, s3, {STAMP + self.k*65536}\nv_and_b32 v{vt+1}, 0xc0, v0\nv_mov_b32 v{vt+2}, {BIG}\nv_and_b32 v{vt}, 63, v0\nv_cmp_eq_u32 vcc, 0, v{vt}\nv_cndmask_b32 v{vt}, v{vt+2}, v{vt+1}, vcc")
        for i in range(self.n):
            p.emit(f"v_mov_b32 v{vt+1}, s{self.regs[i]}\nbuffer_store_dword v{vt+1}, v{vt}, s[{srd}:{srd+3}], s3 offen offset:{4*i}")
        print("stamps", self.k, self.names, file=sys.stderr)

sX, sW, sWS, sQ, s1, s3_, sWP, sB2 = 24, 28, 32, 36, 40, 44, 48, 52
G, J, RH, C, W = 60, 61, 62, 63, 64
TAG, EXP = 22, 23
vLANE = 1

def kernargs(p):
    p.emit("s_load_dwordx8 s[4:11], s[0:1], 0\ns_load_dwordx4 s[12:15], s[0:1], 40\ns_load_dwordx4 s[16:19], s[0:1], 56\ns_load_dwordx2 s[20:21], s[0:1], 80")
def ids(p):
    p.emit(f"""v_lshrrev_b32 v{vLANE}, 6, v0
s_and_b32 s56, s2, 7
s_lshr_b32 s57, s2, 3
v_readfirstlane_b32 s{W}, v{vLANE}
s_and_b32 s58, s56, 1
s_lshr_b32 s59, s56, 1
s_lshr_b32 s65, s57, 2
s_and_b32 s66, s57, 3
s_lshl3_add_u32 s{G}, s58, s65
s_lshl2_add_u32 s{J}, s59, s66
s_lshl3_add_u32 s{RH}, s59, s65
s_lshl2_add_u32 s{C}, s58, s66
v_and_b32 v{vLANE}, 63, v0""")
def tag_load(p): p.emit(f"s_add_u32 s56, s20, {EPOCH}\ns_addc_u32 s57, s21, 0\ns_load_dword s{TAG}, s[56:57], 0")
def tag_make(p): p.emit(f"s_mul_i32 s{TAG}, s{TAG}, 0x41c64e6d\ns_add_u32 s{TAG}, s{TAG}, 0x3039\ns_cmp_eq_u32 s{W}, 0\ns_cselect_b32 s{EXP}, s{TAG}, 0")

def prep_issue_b1(p, V):
    srd(p, sQ, 6, 640*3840); srd(p, s1, 12, 640*3072); srd(p, s3_, 14, 640*3072)
    a, b, c_, d, e, f = range(V, V + 6)
    p.emit(f"""v_lshrrev_b32 v{a}, 4, v{vLANE}
v_and_b32 v{b}, 15, v{vLANE}
v_mul_u32_u24 v{c_}, 52, v{b}
v_lshrrev_b32 v{c_}, 8, v{c_}
v_mul_u32_u24 v{d}, 1200, v{c_}
v_lshl_add_u32 v{d}, v{b}, 4, v{d}
v_add_u32 v{d}, 1280, v{d}
v_subrev_u32 v{e}, 3840, v{d}
v_cmp_lt_u32 vcc, 9, v{b}
v_cndmask_b32 v{d}, v{d}, v{e}, vcc
v_mul_u32_u24 v{e}, 3840, v{a}
v_add_u32 v{d}, v{d}, v{e}
v_mov_b32 v{f}, {BIG}
v_cmp_gt_u32 vcc, 15, v{b}
v_cndmask_b32 v{d}, v{f}, v{d}, vcc
s_lshl_b32 s56, s{J}, 6
s_sub_u32 s57, 1920, s56
v_lshlrev_b32 v{e}, 4, v{b}
v_add_u32 v{c_}, s57, v{e}
v_cmp_lt_u32 vcc, 7, v{b}
v_cndmask_b32 v{e}, v{e}, v{c_}, vcc
v_mul_u32_u24 v{c_}, 3072, v{a}
v_add_u32 v{e}, v{e}, v{c_}
v_cmp_gt_u32 vcc, 12, v{b}
v_cndmask_b32 v{e}, v{f}, v{e}, vcc
s_mul_i32 s57, s{G}, 40
s_lshl2_add_u32 s57, s{W}, s57
s_mul_i32 s58, s57, 3840
s_mul_i32 s59, s{J}, 80
s_add_u32 s58, s58, s59
s_mul_i32 s57, s57, 3072
s_lshl1_add_u32 s57, s56, s57
s_lshl_b32 s59, s{W}, 10""")
    for i in range(3):
        if i == 2:
            p.emit(f"s_cmp_lt_u32 s{W}, 2\ns_cselect_b64 s[66:67], -1, 0\nv_cndmask_b32 v{d}, v{f}, v{d}, s[66:67]\nv_cndmask_b32 v{e}, v{f}, v{e}, s[66:67]")
        for (reg, sr, so, lb) in ((d, sQ, 58, L_SQ), (e, s1, 57, L_S1), (e, s3_, 57, L_S3)):
            if i < 2: p.emit(f"s_add_u32 m0, s59, {lb + i*4096}")
            else: p.emit(f"s_add_u32 s65, s59, {lb + i*4096}\ns_cmp_lt_u32 s{W}, 2\ns_cselect_b32 m0, s65, {L_SD}")
            p.emit(f"buffer_load_dwordx4 v{reg}, s[{sr}:{sr+3}], s{so} offen lds", tok="SRC")
        if i < 2: p.emit("s_add_u32 s58, s58, 16*3840\ns_add_u32 s57, s57, 16*3072")

def prep_issue_stats(p, V):
    t = V + 10
    p.emit(f"""s_lshl3_add_u32 s56, s{G}, 0
s_lshl1_add_u32 s56, s56, s{J}
s_lshl2_add_u32 s56, s56, s{W}
s_mul_i32 s56, s56, 2560
v_lshrrev_b32 v{t}, 5, v{vLANE}
v_mul_u32_u24 v{t}, 1280, v{t}
v_and_b32 v{t+1}, 31, v{vLANE}
v_lshl_add_u32 v{t+2}, v{t+1}, 4, v{t}
v_lshl_add_u32 v{t}, v{t+1}, 3, v{t}
buffer_load_dwordx4 v[{V}:{V+3}], v{t+2}, s[{sX}:{sX+3}], s56 offen
buffer_load_dwordx4 v[{V+4}:{V+7}], v{t+2}, s[{sX}:{sX+3}], s56 offen offset:512
buffer_load_dwordx2 v[{V+8}:{V+9}], v{t}, s[{sX}:{sX+3}], s56 offen offset:1024""")

def red32(p, v, t):
    for k in (8, 4, 2, 1): p.emit(f"v_add_f32_dpp v{v}, v{v}, v{v} row_ror:{k} row_mask:0xf bank_mask:0xf")
    p.emit(f"v_mov_b32 v{t}, v{v}\nv_permlane16_swap_b32 v{v}, v{t}\nv_add_f32 v{v}, v{v}, v{t}")

def prep_stats(p, V, U):
    a, b, c_, d = U + 20, U + 21, U + 22, U + 23
    for i in range(10): p.emit(f"v_lshlrev_b32 v{U+2*i}, 16, v{V+i}\nv_and_b32 v{U+2*i+1}, 0xffff0000, v{V+i}")
    p.emit(f"v_add_f32 v{a}, v{U}, v{U+1}\nv_add_f32 v{b}, v{U+2}, v{U+3}")
    for i in range(4, 20, 2): p.emit(f"v_add_f32 v{a}, v{a}, v{U+i}\nv_add_f32 v{b}, v{b}, v{U+i+1}")
    p.emit(f"v_add_f32 v{a}, v{a}, v{b}")
    red32(p, a, b)
    p.emit(f"s_mov_b32 s56, 0x3acccccd\nv_mul_f32 v{a}, s56, v{a}")
    for i in range(20): p.emit(f"v_sub_f32 v{U+i}, v{U+i}, v{a}")
    p.emit(f"v_mul_f32 v{b}, v{U}, v{U}\nv_mul_f32 v{c_}, v{U+1}, v{U+1}")
    for i in range(2, 20, 2): p.emit(f"v_fmac_f32 v{b}, v{U+i}, v{U+i}\nv_fmac_f32 v{c_}, v{U+i+1}, v{U+i+1}")
    p.emit(f"v_add_f32 v{b}, v{b}, v{c_}")
    red32(p, b, c_)
    o = U + 24
    p.emit(f"""v_mul_f32 v{b}, s56, v{b}
v_cvt_pk_bf16_f32 v{o}, -v{a}, -v{a}
v_cvt_pk_bf16_f32 v{b}, v{b}, v{b}
v_lshlrev_b32 v{b}, 16, v{b}
v_add_f32 v{b}, 0x3727c5ac, v{b}
v_cvt_pk_bf16_f32 v{b}, v{b}, v{b}
v_lshlrev_b32 v{b}, 16, v{b}
v_sqrt_f32 v{b}, v{b}
v_mov_b32 v{o+3}, s{TAG}
v_cvt_pk_bf16_f32 v{b}, v{b}, v{b}
v_lshlrev_b32 v{b}, 16, v{b}
v_rcp_f32 v{o+1}, v{b}
v_mul_f32 v{o+2}, v{b}, v{b}
v_and_b32 v{c_}, 31, v{vLANE}
v_lshrrev_b32 v{d}, 1, v{vLANE}
v_mov_b32 v{a}, {BIG}
v_cmp_eq_u32 vcc, 0, v{c_}
v_cndmask_b32 v{d}, v{a}, v{d}, vcc
s_lshl3_add_u32 s56, s{G}, 0
s_lshl1_add_u32 s56, s56, s{J}
s_lshl2_add_u32 s56, s56, s{W}
s_lshl_b32 s56, s56, 5
s_add_u32 s56, s56, {STA}
buffer_store_dwordx4 v[{o}:{o+3}], v{d}, s[{sWS}:{sWS+3}], s56 offen sc1""")

def prep_repack_b1(p, V, lab):
    half, grp, r_, cc, ad, ad2, dst, acc, acc2, t0, t1 = range(V, V + 11)
    D = V + 12
    p.emit(f"""v_lshrrev_b32 v{half}, 5, v{vLANE}
v_bfe_u32 v{grp}, v{vLANE}, 4, 1
v_bfe_u32 v{r_}, v{vLANE}, 2, 2
v_and_b32 v{cc}, 3, v{vLANE}
v_lshlrev_b32 v{r_}, 8, v{r_}
v_lshlrev_b32 v{t0}, 5, v{grp}
v_lshl_add_u32 v{t0}, v{cc}, 3, v{t0}
v_add_u32 v{t0}, v{t0}, v{r_}
s_mov_b32 s65, 0x3f803f80
s_mul_i32 s57, s{G}, 5
s_mul_i32 s58, s{J}, {B1J}
s_lshl4_add_u32 s59, s{J}, s{G}
s_mul_i32 s59, s59, 1280
s_add_u32 s59, s59, {CSP}
v_and_b32 v{dst}, 31, v{vLANE}
v_lshlrev_b32 v{dst}, 4, v{dst}
v_lshlrev_b32 v{t1}, 2, v{vLANE}""")
    sn = p.snapshot()
    def reads(a, off, base):
        for k in range(5): p.emit(f"ds_read_b64_tr_b16 v[{base+4*k}:{base+4*k+1}], v{a} offset:{off + 2048*k}\nds_read_b64_tr_b16 v[{base+4*k+2}:{base+4*k+3}], v{a} offset:{off + 2048*k + 1024}")
    def colsum(a, base):
        for k in range(20): p.emit(f"v_dot2_f32_bf16 v{a}, v{base+k}, s65, {'0' if k == 0 else f'v{a}'}")
    p.emit(f"s_cmp_eq_u32 s{W}, 3\ns_cbranch_scc1 {lab}_w3")
    p.emit(f"""s_lshl_b32 s56, s{W}, 3
v_lshrrev_b32 v{ad}, 1, v{cc}
v_lshl_add_u32 v{ad}, v{grp}, 1, v{ad}
v_lshl_add_u32 v{ad}, v{half}, 2, v{ad}
v_add_u32 v{ad}, s56, v{ad}
v_min_u32 v{ad}, 14, v{ad}
{vdiv(ad2, ad, 5, 15)}
v_mul_u32_u24 v{ad2}, 40, v{ad2}
v_lshl_add_u32 v{ad}, v{ad}, 3, v{ad2}
v_and_b32 v{ad2}, 1, v{cc}
v_mul_u32_u24 v{ad2}, 40, v{ad2}
v_add3_u32 v{ad}, v{ad}, v{ad2}, v{r_}
v_add_u32 v{ad}, {L_SQ}, v{ad}
v_mul_u32_u24 v{ad2}, {L_S3-L_S1}, v{half}
v_add_u32 v{ad2}, v{ad2}, v{t0}
v_add_u32 v{ad2}, {L_S1+128}, v{ad2}
s_cmp_eq_u32 s{W}, 2
s_cselect_b64 s[66:67], -1, 0
v_cndmask_b32 v{ad}, v{ad}, v{ad2}, s[66:67]""")
    reads(ad, 0, D)
    p.emit(f"""s_cmp_eq_u32 s{W}, 1
s_cselect_b64 s[68:69], -1, 0
v_lshl_add_u32 v{dst}, v{half}, 10, v{dst}
v_mov_b32 v{ad}, 3072
v_mov_b32 v{ad2}, 2048
v_cndmask_b32 v{ad}, v{ad}, v{ad2}, s[66:67]
v_mul_u32_u24 v{ad2}, v{half}, v{ad2}
v_sub_u32 v{ad2}, v{ad}, v{ad2}
v_cndmask_b32 v{ad}, v{ad}, v{ad2}, s[68:69]
v_mul_u32_u24 v{ad2}, {122880-1024-2048}, v{half}
v_add_u32 v{ad2}, 2048, v{ad2}
v_cndmask_b32 v{ad2}, 0, v{ad2}, s[68:69]
v_add_u32 v{dst}, v{dst}, v{ad2}
s_cmp_eq_u32 s{W}, 2
s_cselect_b32 s56, 163840, 0
s_add_u32 s58, s58, s56""")
    for k in range(5):
        p.emit(f"""s_add_u32 s56, s57, {k}
s_lshr_b32 s65, s56, 1
s_and_b32 s56, s56, 1
s_lshl_b32 s56, s56, 9
s_add_u32 s56, s56, s58
v_mad_u32_u24 v{ad2}, v{ad}, s65, v{dst}
buffer_store_dwordx4 v[{D+4*k}:{D+4*k+3}], v{ad2}, s[{sWS}:{sWS+3}], s56 offen sc1""")
    p.emit("s_mov_b32 s65, 0x3f803f80")
    colsum(acc, D)
    p.emit(f"s_lshl_b32 s56, s{W}, 8\ns_add_u32 s56, s56, s59\nbuffer_store_dword v{acc}, v{t1}, s[{sWS}:{sWS+3}], s56 offen offset:512 sc1")
    p.emit(f"s_branch {lab}_j")
    p.raw(f"{lab}_w3:")
    p.restore(sn)
    p.emit(f"v_lshl_add_u32 v{ad}, v{half}, 6, v{t0}\nv_add_u32 v{ad}, {L_S1}, v{ad}")
    reads(ad, 0, D); reads(ad, L_S3 - L_S1, D + 20)
    colsum(acc, D); colsum(acc2, D + 20)
    p.emit(f"buffer_store_dword v{acc}, v{t1}, s[{sWS}:{sWS+3}], s59 offen sc1\nbuffer_store_dword v{acc2}, v{t1}, s[{sWS}:{sWS+3}], s59 offen offset:256 sc1")
    p.raw(f"{lab}_j:")
    p.join(sn, 2, "PUB0")

def prep_wp_issue(p, V):
    srd(p, sWP, 8, 25600)
    a, b, c_, d, e = range(V + 8, V + 13)
    p.emit(f"""s_cmp_ge_u32 s{G}, 3
s_cselect_b32 s56, 16, 0
s_cselect_b32 s57, 3, 0
s_sub_u32 s57, s{G}, s57
s_lshl_b32 s57, s57, 3
v_and_b32 v{a}, 31, v{vLANE}
v_lshrrev_b32 v{b}, 5, v{vLANE}
v_bfe_u32 v{c_}, v{a}, 2, 1
v_lshrrev_b32 v{d}, 3, v{a}
v_and_b32 v{a}, 3, v{a}
v_lshl_add_u32 v{d}, v{d}, 2, v{a}
v_add_u32 v{d}, s56, v{d}
s_lshl_b32 s58, s{J}, 1
v_add_u32 v{a}, s58, v{b}
v_mul_u32_u24 v{a}, 800, v{a}
v_lshl_add_u32 v{a}, v{d}, 1, v{a}
v_cmp_eq_u32 vcc, v{b}, v{c_}
v_cmp_gt_u32 s[66:67], 20, v{d}
s_and_b64 vcc, vcc, s[66:67]
s_cmp_eq_u32 s{W}, 3
s_cselect_b32 s59, s{G}, 99
s_cmp_lt_u32 s59, 6
s_cselect_b64 s[66:67], -1, 0
s_cselect_b64 vcc, vcc, 0
v_mov_b32 v{e}, {BIG}
v_cndmask_b32 v{a}, v{e}, v{a}, vcc
v_lshlrev_b32 v{b}, 4, v{vLANE}
v_cndmask_b32 v{b}, v{e}, v{b}, s[66:67]""")
    for jj in range(8):
        p.emit(f"""s_add_u32 s58, s57, {jj}
s_cmp_lt_u32 s58, 20
s_cselect_b64 s[66:67], -1, 0
s_mul_i32 s58, s58, 40
v_cndmask_b32 v{c_}, v{e}, v{a}, s[66:67]
buffer_load_ushort v{V+jj}, v{c_}, s[{sWP}:{sWP+3}], s58 offen""")
def prep_wp_store(p, V):
    for q in range(4): p.emit(f"v_lshl_or_b32 v{V+q}, v{V+1+2*q}, 16, v{V+2*q}")
    p.emit(f"s_mul_i32 s56, s{J}, 6144\ns_lshl_b32 s57, s{G}, 10\ns_add_u32 s56, s56, s57\ns_add_u32 s56, s56, {WPF}")
    p.emit(f"buffer_store_dwordx4 v[{V}:{V+3}], v{V+9}, s[{sWS}:{sWS+3}], s56 offen sc1", tok="PUB0")

def prep_b2_issue(p, V, sKS):
    p.emit(f"""s_lshr_b32 s56, s{W}, 1
s_add_u32 s56, s56, s{sKS}
s_and_b32 s57, s{W}, 1
s_cmp_lt_u32 s56, 48
s_cselect_b32 s{sB2}, s16, s10
s_cselect_b32 s{sB2+1}, s17, s11
s_mov_b32 s{sB2+2}, 640*1280
s_cselect_b32 s{sB2+2}, 1536*1280, s{sB2+2}
s_and_b32 s{sB2+1}, s{sB2+1}, 0xffff
s_mov_b32 s{sB2+3}, 0x20000
s_lshl_b32 s58, s56, 5
s_lshl2_add_u32 s58, s57, s58
s_mul_i32 s59, s{C}, 160
s_lshl_b32 s65, s{W}, 12
s_add_u32 m0, s65, {L_B2}""")
    for mm in range(4):
        p.emit(f"""s_sub_u32 s65, s56, 48
s_lshl1_add_u32 s65, s65, s57
s_lshl1_add_u32 s65, s65, {mm>>1}
s_mul_i32 s66, s65, 205
s_lshr_b32 s66, s66, 10
s_mul_i32 s67, s66, 5
s_sub_u32 s67, s65, s67
s_lshl_b32 s68, s67, 3
s_cmp_gt_u32 s67, 2
s_cselect_b32 s69, 4, 0
s_sub_u32 s68, s68, s69
s_mul_i32 s66, s66, 40
s_add_u32 s68, s68, s66""")
        if mm & 1: p.emit("s_cmp_eq_u32 s67, 2\ns_cselect_b32 s69, 20, 4\ns_add_u32 s68, s68, s69")
        p.emit(f"""s_add_u32 s69, s58, {16*(mm>>1) + 8*(mm&1)}
s_cmp_lt_u32 s56, 48
s_cselect_b32 s68, s69, s68
s_mul_i32 s68, s68, 1280
s_add_u32 s68, s68, s59
s_sub_u32 s68, s68, {1024*mm}""" if mm else f"""s_cmp_lt_u32 s56, 48
s_cselect_b32 s68, s58, s68
s_mul_i32 s68, s68, 1280
s_add_u32 s68, s68, s59""")
        p.emit(f"buffer_load_dwordx4 v{V}, s[{sB2}:{sB2+3}], s68 offen offset:{1024*mm} lds", tok="SB2")
def prep_b2_voff(p, V):
    p.emit(f"""v_lshrrev_b32 v{V}, 4, v{vLANE}
v_mul_u32_u24 v{V}, 1280, v{V}
v_and_b32 v{V+1}, 15, v{vLANE}
v_lshl_add_u32 v{V}, v{V+1}, 4, v{V}
v_cmp_gt_u32 vcc, 10, v{V+1}
v_mov_b32 v{V+1}, {BIG}
v_cndmask_b32 v{V}, v{V+1}, v{V}, vcc""")
def prep_b2_repack(p, V, sKS):
    a, d = V, V + 1; D = V + 2
    p.emit(f"""v_lshrrev_b32 v{a}, 4, v{vLANE}
v_bfe_u32 v{d}, v{vLANE}, 2, 2
v_lshl_add_u32 v{a}, v{a}, 3, v{d}
v_lshlrev_b32 v{a}, 8, v{a}
v_and_b32 v{d}, 3, v{vLANE}
v_mul_u32_u24 v{d}, 40, v{d}
s_lshr_b32 s56, s{W}, 1
s_and_b32 s57, s{W}, 1
s_lshl_b32 s58, s56, 13
s_mul_i32 s59, s57, 16
s_add_u32 s58, s58, s59
s_add_u32 s58, s58, {L_B2}
v_add3_u32 v{a}, v{a}, v{d}, s58
s_add_u32 s56, s56, s{sKS}
s_mul_i32 s56, s56, 5120
s_mul_i32 s58, s{C}, 348160
s_add_u32 s56, s56, s58
s_lshl_b32 s57, s57, 11
s_add_u32 s56, s56, s57
s_add_u32 s56, s56, {B2F}
v_lshlrev_b32 v{d}, 4, v{vLANE}""")
    for t in range(3): p.emit(f"ds_read_b64_tr_b16 v[{D+4*t}:{D+4*t+1}], v{a} offset:{8*t}\nds_read_b64_tr_b16 v[{D+4*t+2}:{D+4*t+3}], v{a} offset:{8*t+1024}")
    for t in range(3): p.emit(f"buffer_store_dwordx4 v[{D+4*t}:{D+4*t+3}], v{d}, s[{sWS}:{sWS+3}], s56 offen offset:{1024*t} sc1", tok="PUBB")

def gen_prep(opt):
    p = Prog(); name = "prep_kernel"
    header(p, name)
    p.emit("s_cmp_ge_u32 s2, 256\ns_cbranch_scc1 K0_end")
    kernargs(p); ids(p)
    srd(p, sX, 4, 2048*1280); srd(p, sWS, 20, WS_N)
    tag_load(p)
    prep_issue_b1(p, 2)
    prep_issue_stats(p, 12)
    prep_wp_issue(p, 28)
    prep_b2_voff(p, 44)
    p.emit(f"s_lshl_b32 s80, s{RH}, 1")
    prep_b2_issue(p, 44, 80)
    tag_make(p)
    prep_stats(p, 12, 48)
    prep_wp_store(p, 28)
    p.wait_tok("SRC", "SB2"); p.emit("s_barrier")
    prep_b2_repack(p, 46, 80)
    prep_repack_b1(p, 64, "K0r")
    p.emit(f"s_cmp_ge_u32 s{RH}, 2\ns_cbranch_scc1 K0_end")
    p.emit("s_waitcnt vmcnt(0) lgkmcnt(0)\ns_barrier")
    p.emit(f"s_lshl1_add_u32 s80, s{RH}, 64")
    prep_b2_issue(p, 44, 80)
    p.wait_tok("SB2"); p.emit("s_barrier")
    prep_b2_repack(p, 46, 80)
    p.raw("K0_end:")
    p.emit("s_endpgm")
    return name, p, kd(name, 128, 128), (256, 256, LDS_N)

def softmax_fill(F, P, T, isq, OUT, keep, tmp, vCP, vCE):
    mx, mn, a, b, s1_, s2_ = [tmp + i for i in range(6)]
    F.add(f"v_max3_f32 v{mx}, v{P}, v{P+1}, v{P+2}\nv_min3_f32 v{mn}, v{P}, v{P+1}, v{P+2}")
    for k in range(3, 19, 2):
        F.add(f"v_max3_f32 v{mx}, v{mx}, v{P+k}, v{P+k+1}\nv_min3_f32 v{mn}, v{mn}, v{P+k}, v{P+k+1}")
    F.add(f"v_max_f32 v{mx}, v{mx}, v{P+19}\nv_min_f32 v{mn}, v{mn}, v{P+19}")
    F.add(f"v_mul_f32 v{a}, v{vCE}, v{mx}\nv_mul_f32 v{b}, v{vCP}, v{mn}")
    F.add(f"v_fma_f32 v{T}, v{P}, v{vCP}, v{a}\nv_fma_f32 v{P}, v{P}, v{vCE}, v{b}")
    for i in range(20):
        F.add(f"v_exp_f32 v{T+i}, v{T+i}")
        if i < 19: F.add(f"v_fma_f32 v{T+i+1}, v{P+i+1}, v{vCP}, v{a}")
        F.add(f"v_exp_f32 v{P+i}, v{P+i}")
        if i < 19: F.add(f"v_fma_f32 v{P+i+1}, v{P+i+1}, v{vCE}, v{b}")
        if i == 2: F.add(f"v_add_f32 v{s1_}, v{T}, v{T+1}\nv_add_f32 v{s2_}, v{P}, v{P+1}")
        elif i > 2: F.add(f"v_add_f32 v{s1_}, v{s1_}, v{T+i-1}\nv_add_f32 v{s2_}, v{s2_}, v{P+i-1}")
    F.add(f"v_add_f32 v{s1_}, v{s1_}, v{T+19}\nv_add_f32 v{s2_}, v{s2_}, v{P+19}")
    if isq:
        F.add(f"v_rcp_f32 v{s2_}, v{s2_}\nv_mul_f32 v{keep}, 0x358637bd, v{s1_}\nv_mul_f32 v{s2_}, v{s2_}, v{s1_}")
        for i in range(10):
            F.add(f"v_cvt_pk_bf16_f32 v{OUT+i}, v{T+2*i}, v{T+2*i+1}")
            F.add(f"v_mul_f32 v{P+2*i}, v{P+2*i}, v{s2_}\nv_mul_f32 v{P+2*i+1}, v{P+2*i+1}, v{s2_}")
        for i in range(10): F.add(f"v_cvt_pk_bf16_f32 v{OUT+10+i}, v{P+2*i}, v{P+2*i+1}")
    else:
        F.add(f"v_rcp_f32 v{s1_}, v{s1_}\nv_rcp_f32 v{s2_}, v{s2_}")
        for i in range(10):
            F.add(f"v_mul_f32 v{T+2*i}, v{T+2*i}, v{s1_}\nv_mul_f32 v{T+2*i+1}, v{T+2*i+1}, v{s1_}")
            F.add(f"v_mul_f32 v{P+2*i}, v{P+2*i}, v{s2_}\nv_mul_f32 v{P+2*i+1}, v{P+2*i+1}, v{s2_}")
            F.add(f"v_cvt_pk_bf16_f32 v{OUT+i}, v{T+2*i}, v{T+2*i+1}\nv_cvt_pk_bf16_f32 v{OUT+10+i}, v{P+2*i}, v{P+2*i+1}")

def silu_fill(F, Gt, U, tmp, OUT, vCE, vS2):
    for i in range(0, 16, 2):
        t0, t1 = tmp + (i & 2), tmp + (i & 2) + 1
        F.add(f"v_mul_f32 v{t0}, v{vCE}, v{Gt+i}\nv_mul_f32 v{t1}, v{vCE}, v{Gt+i+1}")
        F.add(f"v_exp_f32 v{t0}, v{t0}\nv_mul_f32 v{Gt+i}, v{Gt+i}, v{U+i}\nv_exp_f32 v{t1}, v{t1}\nv_mul_f32 v{Gt+i+1}, v{Gt+i+1}, v{U+i+1}")
        F.add(f"v_fma_f32 v{t0}, v{t0}, v{vS2}, v{vS2}\nv_fma_f32 v{t1}, v{t1}, v{vS2}, v{vS2}")
        F.add(f"v_rcp_f32 v{t0}, v{t0}\nv_rcp_f32 v{t1}, v{t1}")
        if i >= 2: F.add(f"v_cvt_pk_bf16_f32 v{OUT+i//2-1}, v{Gt+i-2}, v{Gt+i-1}")
        F.add(f"v_mul_f32 v{Gt+i}, v{Gt+i}, v{t0}\nv_mul_f32 v{Gt+i+1}, v{Gt+i+1}, v{t1}")
    F.add(f"v_cvt_pk_bf16_f32 v{OUT+7}, v{Gt+14}, v{Gt+15}")

def gen_main(opt):
    fused = opt.get("fused", 0)
    p = Prog(); name = (NAME + "_kernel") if fused else "main_kernel"
    header(p, name)
    PD = 4; NB = 6
    log = lambda *a: print(*a, file=sys.stderr)
    (vL16, vL16b, vXD0, vXD1, vWD, vXR0, vXR1, vXR2, vXR3, vTR0, vTR1, vTR0b, vTR1b,
     vAFh, vW0, vKA0, vKA1, vKB0, vKB1, vKP, vKP2, vFP, vFS) = range(2, 25)
    vG0, vG1, vGS0, vGS1, vKF0, vKF1, vAFo, vAFo2, vA1, vA2, vA3 = vXD0, vXD1, vWD, vXR0, vXR1, vXR2, vXR3, vTR0, vTR1, vTR0b, vTR1b
    vCSR = 25
    MF = 26
    vRS, vS2, vCP, vCE, VS1 = 30, 31, 32, 33, 34
    CF = 36
    AC1 = 44
    AC2 = 108
    PP = 172
    TT = 204
    TM = 224
    PHQ = 236
    ACC = 76
    XA = 0; BA = 232
    ST = Stamps(p, opt.get("stamp"), 1, list(range(84, 102, 2)))
    p.emit("s_cmp_ge_u32 s2, 256\ns_cbranch_scc1 M_end")
    ST("start")
    kernargs(p); ids(p)
    p.emit(f"s_and_b32 s56, s{G}, 7\ns_and_b32 s57, s{J}, 3\ns_mul_i32 s57, s57, 5\ns_add_u32 s57, s57, 1\ns_lshr_b32 s57, s57, 1\ns_add_u32 s56, s56, s57" if opt.get("rot", 1) else "s_mov_b32 s56, 0")
    for m in range(10):
        p.emit(f"s_add_u32 s{70+m}, s56, {m}\ns_cmp_ge_u32 s{70+m}, 10\ns_cselect_b32 s57, 10, 0\ns_sub_u32 s{70+m}, s{70+m}, s57")
        if m == 0: p.emit("s_mov_b32 s56, s70")
    p.emit(f"""v_lshlrev_b32 v{vL16}, 4, v{vLANE}
v_lshrrev_b32 v{TM}, 3, v{vLANE}
v_and_b32 v{TM+1}, 7, v{vLANE}
v_lshrrev_b32 v{TM+2}, 4, v{vLANE}
v_xor_b32 v{TM+3}, v{TM+1}, v{TM+2}
v_mul_u32_u24 v{vXD0}, 1280, v{TM}
v_lshl_add_u32 v{vXD0}, v{TM+3}, 4, v{vXD0}
v_xor_b32 v{vXD1}, 64, v{vXD0}
v_and_b32 v{TM+2}, 1, v{TM+2}
v_lshlrev_b32 v{TM+2}, 2, v{TM+2}
v_xor_b32 v{TM+1}, v{TM+1}, v{TM+2}
v_mul_u32_u24 v{vWD}, 3072, v{TM}
v_lshl_add_u32 v{vWD}, v{TM+1}, 4, v{vWD}""")
    srd(p, sX, 4, 2048*1280); srd(p, sWS, 20, WS_N)
    p.emit(f"""s_bitcmp1_b32 s{W}, 0
s_cselect_b32 s{sW}, s14, s12
s_cselect_b32 s{sW+1}, s15, s13
s_and_b32 s{sW+1}, s{sW+1}, 0xffff
s_mov_b32 s{sW+2}, 640*3072
s_mov_b32 s{sW+3}, 0x20000
s_lshl2_add_u32 s80, s{G}, s{W}
s_mul_i32 s81, s80, 40960
s_lshr_b32 s82, s{W}, 1
s_mul_i32 s83, s82, 32*3072
s_lshl_b32 s57, s{J}, 7
s_add_u32 s83, s83, s57
s_and_b32 s57, s{W}, 1
s_lshl1_add_u32 s82, s57, s82
s_lshl_b32 s82, s82, 12
s_mul_i32 s3, s{W}, 12288""")
    tag_load(p)
    def xdma(m):
        L = []
        for e in range(4):
            su = f"s_lshl_b32 s4, s{70+m}, 7\ns_add_u32 m0, s3, {XS + (m % 3)*4096}\ns_add_u32 s4, s4, s81\n" if e == 0 else f"s_add_u32 m0, s3, {XS + (m % 3)*4096}\ns_add_u32 s4, s4, {10240-1024}\n"
            L.append(su + f"buffer_load_dwordx4 v{vXD1 if e & 1 else vXD0}, s[{sX}:{sX+3}], s4 offen offset:{1024*e} lds")
        return L
    split = opt.get("split", 0)
    stages = [('c1', m) for m in range(10)]
    if split: stages += [('c2', m) for m in range(10)] + [('t3', m) for m in range(3)]
    else: stages += [('c2u', m) for m in range(10)]
    stages += [('g2', m) for m in range(5)]
    NS = len(stages)
    def bdma(t):
        kind, m = stages[t]; slot = RING + (t % R)*16384
        if kind == 'c1':
            L = []
            for e in range(4):
                su = f"s_mul_i32 s5, s{70+m}, 64*3072\ns_add_u32 m0, s82, {slot}\ns_add_u32 s5, s5, s83\n" if e == 0 else f"s_add_u32 m0, s82, {slot}\ns_add_u32 s5, s5, {24576-1024}\n"
                L.append(su + f"buffer_load_dwordx4 v{vWD}, s[{sW}:{sW+3}], s5 offen offset:{1024*e} lds")
            return L
        n = 4; mr = 38
        if kind == 'c2u': su = f"s_mul_i32 s5, s{70+m}, s37\n"; ad = 36
        elif kind == 'c2': su = f"s_mul_i32 s5, s{70+m}, 12288\n"; ad = 36; n = 3; mr = 37
        elif kind == 't3':
            su = f"s_add_u32 s5, s70, s{W}\ns_add_u32 s5, s5, {4*m}\ns_cmp_ge_u32 s5, 10\ns_cselect_b32 s12, 10, 0\ns_sub_u32 s5, s5, s12\ns_cmp_ge_u32 s5, 10\ns_cselect_b32 s12, 10, 0\ns_sub_u32 s5, s5, s12\ns_lshl_b32 s5, s5, 12\n"; ad = 39
        elif kind == 'g2': su = f"s_bitcmp1_b32 s{W}, 1\ns_cselect_b32 s5, s{70+2*m+1}, s{70+2*m}\ns_lshl_b32 s5, s5, 13\n"; ad = 40
        L = []
        for e in range(n):
            pre = (su + f"s_add_u32 m0, s{mr}, {slot}\ns_add_u32 s5, s5, s{ad}\n") if e == 0 else f"s_add_u32 m0, s{mr}, {slot}\n"
            L.append(pre + f"buffer_load_dwordx4 v{vL16}, s[{sWS}:{sWS+3}], s5 offen offset:{1024*e} sc1 lds")
        return L
    def emit_dma(L, tok):
        for x in L:
            ls = x.split("\n")
            for l in ls[:-1]: p.emit(l)
            p.emit(ls[-1], tok=tok)
    if fused:
        prep_issue_b1(p, PP)
        prep_issue_stats(p, PP + 8)
    emit_dma(bdma(0), "D0"); emit_dma(xdma(0), "X0")
    ST("iss0")
    p.emit(f"""v_add_u32 v{vL16b}, 0x10000, v{vL16}
v_and_b32 v{TM}, 31, v{vLANE}
v_lshrrev_b32 v{TM+1}, 5, v{vLANE}
v_bfe_u32 v{TM+2}, v{vLANE}, 1, 3
v_xor_b32 v{TM+2}, v{TM+2}, v{TM+1}
v_lshlrev_b32 v{TM+2}, 4, v{TM+2}
v_lshl_add_u32 v{TM+2}, v{TM}, 7, v{TM+2}
s_add_u32 s56, s3, {XS}
v_add_u32 v{vXR0}, s56, v{TM+2}
v_xor_b32 v{vXR1}, 32, v{vXR0}
v_xor_b32 v{vXR2}, 64, v{vXR0}
v_xor_b32 v{vXR3}, 96, v{vXR0}
v_bfe_u32 v{TM}, v{vLANE}, 2, 2
v_lshl_add_u32 v{TM+1}, v{TM+1}, 3, v{TM}
v_lshlrev_b32 v{TM+1}, 7, v{TM+1}
v_lshrrev_b32 v{TM}, 1, v{TM}
v_lshlrev_b32 v{TM}, 6, v{TM}
v_bfe_u32 v{TM+2}, v{vLANE}, 4, 1
v_lshl_add_u32 v{TM}, v{TM+2}, 5, v{TM}
v_and_b32 v{TM+2}, 3, v{vLANE}
v_lshl_add_u32 v{TM}, v{TM+2}, 3, v{TM}
v_add_u32 v{vTR0}, v{TM}, v{TM+1}
v_xor_b32 v{vTR1}, 64, v{vTR0}
v_add_u32 v{vTR0b}, 0x10000, v{vTR0}
v_add_u32 v{vTR1b}, 0x10000, v{vTR1}""")
    emit_dma(bdma(1), "D1"); emit_dma(xdma(1), "X1")
    tag_make(p)
    if fused:
        prep_wp_issue(p, AC2)
        prep_stats(p, PP + 8, AC2 + 16)
        p.wait_tok("SRC"); p.emit("s_barrier")
        prep_repack_b1(p, AC1, "Mr")
        prep_wp_store(p, AC2)
    seq = []
    for t, (kind, m) in enumerate(stages):
        slot = RING + (t % R)*16384
        if kind == 'c1':
            for e in range(4):
                for (mt, tt) in ((0,0),(1,0),(0,1),(1,1)):
                    seq.append(dict(t=t, tr=(tt, slot + mt*8192 + e*2048), acc=AC1 + 32*mt + 16*tt, s=4*m + e, first=(m == 0 and e == 0)))
        elif kind in ('c2', 'c2u'):
            for e in range(4):
                for tl in range(3 if kind == 'c2' else 4):
                    off = slot + e*3072 + tl*1024 if tl < 3 else slot + 12288 + e*1024
                    seq.append(dict(t=t, off=off, acc=AC2 + 16*tl, s=4*m + e, first=False))
        elif kind == 't3':
            for e in range(16 if m < 2 else 8): seq.append(dict(t=t, off=slot + e*1024, acc=AC2 + 48, s=16*m + e, first=False))
        elif kind == 'g2':
            for e in range(8):
                for mt in range(2): seq.append(dict(t=t, off=slot + e*2048 + mt*1024, acc=AC1 + 16*mt, s=8*m + e, first=False))
    NM = len(seq)
    for i, x in enumerate(seq): x['sf'] = (i == 0 or seq[i-1]['t'] != x['t']); x['first'] = (x['s'] == 0)
    pos_c1 = 160; pos_kv = 160 + (120 if split else 160); pos_q = 320; pos_end = NM
    st = {'bars': 0, 'bartoks': [], 'pos': 0}
    def bread(i):
        x = seq[i]; b = BA + 4*(i % NB)
        if 'tr' in x:
            tt, off = x['tr']; hi = off + 512 >= 65536
            v = (vTR1b if tt else vTR0b) if hi else (vTR1 if tt else vTR0)
            o = off - (65536 if hi else 0)
            p.emit(f"ds_read_b64_tr_b16 a[{b}:{b+1}], v{v} offset:{o}\nds_read_b64_tr_b16 a[{b+2}:{b+3}], v{v} offset:{o+512}")
        else:
            off = x['off']; p.emit(f"ds_read_b128 a[{b}:{b+3}], v{vL16 if off < 65536 else vL16b} offset:{off & 0xffff}")
    def xread(m, e):
        assert not any(x[1] == f"X{m}" for x in vq), f"x {m} DMA not issued"
        if e == 0: p.wait_tok(f"X{m}")
        s = 4*m + e
        p.emit(f"ds_read_b128 a[{XA+4*s}:{XA+4*s+3}], v{vXR0+e} offset:{(m % 3)*4096}")
    vq = deque()
    def push(L, tok):
        for x in L: vq.append((x, tok))
    gates = {}
    pool = deque([f"a{160+4*k}" for k in range(15)])
    def bar(t):
        assert not any(x[1] == f"D{t}" for x in vq), f"stage {t} DMA not issued"
        p.wait_tok(f"D{t}", *st['bartoks']); st['bartoks'] = []
        p.emit("s_barrier"); st['bars'] += 1
        if t is None or isinstance(t, str): return
        if t + 2 < 10: push(xdma(t + 2), f"X{t+2}")
        nxt = [2, 3] if t == 0 else ([4] if t == 1 else [t - 2 + R])
        if fused and t < 2: nxt = [2] if t == 0 else [3, 4]
        for u in nxt:
            if u < NS:
                if u == 10 and fused: vq.append(('gate', 'S0'))
                push(bdma(u), f"D{u}")
    F = Filler()
    def gate_pos(k): F.q.append(['gate', lambda: st['pos'] >= k])
    def mark(nm): F.act(lambda prog: log(f"  {nm} at pos {st['pos']} bars {st['bars']}"))
    def arm_bar(*toks):
        d = {}
        def arm(prog): st['bartoks'] += list(toks); d['n'] = st['bars']
        F.act(arm); return d
    def wait_bar(d): F.q.append(['gate', lambda: st['bars'] > d['n']])
    def need_bar(*toks): wait_bar(arm_bar(*toks))
    slow = []
    def poll_issue(reg, sbase): F.add(f"buffer_load_dword v{reg}, v{vFP}, s[{sWS}:{sWS+3}], s{sbase} offen sc1")
    def poll_check(reg, sbase, nm):
        def chk(prog):
            prog.emit(f"v_cmp_ne_u32 vcc, s{EXP}, v{reg}"); prog.emit(f"s_cbranch_vccnz M_slow_{nm}"); prog.raw(f"M_back_{nm}:")
            slow.append((nm, f"buffer_load_dword v{reg}, v{vFP}, s[{sWS}:{sWS+3}], s{sbase} offen sc1", f"v_cmp_ne_u32 vcc, s{EXP}, v{reg}"))
            log(f"  poll {nm} checked at pos {st['pos']}")
        F.act(chk)
    def flag_store(sbase): F.add(f"v_mov_b32 v{TM+11}, s{TAG}\nbuffer_store_dword v{TM+11}, v{vFS}, s[{sWS}:{sWS+3}], s{sbase} offen sc1")
    def glue(x):
        while 'scc' in x.w or 'scc' in x.r:
            n = None
            for k, y in enumerate(list(F.q)[:6]):
                if not isinstance(y, I): break
                if 'scc' in y.r: n = k; break
                if 'scc' in y.w: break
            if n is None: return
            for _ in range(n + 1): x = F.q.popleft(); p.emit(x)
    def run(k0, cap):
        while F.q:
            x = F.q[0]
            if isinstance(x, list):
                if x[0] == 'gate':
                    if not x[1](): return
                    F.q.popleft(); continue
                if x[1] > 0:
                    x[1] -= 1; return
                F.q.popleft(); continue
            if callable(x):
                F.q.popleft(); x(p); continue
            if not p.ready(x): return
            if x.kind == 'mfma':
                F.q.popleft(); p.emit(x); k0 = len(p.out); continue
            if p.cost_since(k0) + x.cost > cap: return
            F.q.popleft(); p.emit(x); glue(x)
    n_, hh = TM + 8, TM + 9
    F.add(f"""v_and_b32 v{n_}, 31, v{vLANE}
v_lshrrev_b32 v{hh}, 5, v{vLANE}
s_mul_i32 s40, s{J}, {B1J}
s_lshl_b32 s38, s{W}, 12
s_add_u32 s39, s40, 122880""")
    if split: F.add(f"s_mul_i32 s37, s{W}, 3072\ns_add_u32 s36, s40, s37")
    else: F.add(f"s_add_u32 s36, s40, s38\ns_cmp_eq_u32 s{W}, 3\ns_cselect_b32 s36, s39, s36\ns_cselect_b32 s37, 1, 3\ns_lshl_b32 s37, s37, 12")
    F.add(f"s_and_b32 s56, s{W}, 1\ns_lshl_b32 s56, s56, 12\ns_add_u32 s40, s40, s56\ns_add_u32 s40, s40, 163840")
    F.add(f"""v_mov_b32 v{TM}, {BIG}
v_and_b32 v{TM+1}, 15, v{vLANE}
v_lshlrev_b32 v{TM+1}, 2, v{TM+1}
v_cmp_gt_u32 vcc, 64, v0
v_cndmask_b32 v{vFP}, v{TM}, v{TM+1}, vcc
v_cmp_eq_u32 vcc, 0, v0
v_cndmask_b32 v{vFS}, v{TM}, 0, vcc
s_lshl_b32 s41, s{J}, 8
s_add_u32 s41, s41, {FLG}
s_lshl2_add_u32 s42, s{G}, s41
s_lshl_b32 s43, s{G}, 8
s_lshl2_add_u32 s43, s{J}, s43
s_add_u32 s43, s43, {FLG}
s_lshr_b32 s44, s{RH}, 1
s_lshl_b32 s44, s44, 8
s_add_u32 s44, s44, {FLG}""")
    if fused:
        F.add(f"s_add_u32 s45, s42, {F_S0}")
        need_bar("PUB0"); flag_store(45); mark("S0 flag")
        V = PP
        F.act(lambda prog: (prep_b2_voff(prog, V), prog.emit(f"s_lshl_b32 s46, s{RH}, 1"), prep_b2_issue(prog, V, 46)))
    F.add(f"""s_lshl_b32 s47, s80, 9
s_add_u32 s47, s47, {STA}
v_lshlrev_b32 v{TM+7}, 4, v{n_}""")
    F.add(f"""v_lshrrev_b32 v{TM}, 4, v{n_}
v_mul_u32_u24 v{TM}, {AFRT}, v{TM}
v_and_b32 v{TM+1}, 15, v{n_}
v_lshl_add_u32 v{TM}, v{TM+1}, 4, v{TM}
v_lshl_add_u32 v{vAFh}, v{hh}, 9, v{TM}
s_mul_i32 s48, s80, {2*AFRT}
s_add_u32 s48, s48, {AF}
s_lshl_b32 s49, s{J}, 11
s_add_u32 s49, s49, s48
v_and_b32 v{TM}, 3, v{n_}
v_lshlrev_b32 v{TM}, 2, v{TM}
v_bfe_u32 v{TM+1}, v{n_}, 2, 2
v_or_b32 v{TM}, v{TM}, v{TM+1}
v_lshlrev_b32 v{TM+1}, 2, v{hh}
v_xor_b32 v{TM}, v{TM}, v{TM+1}
s_lshl_b32 s56, s{W}, 13
s_add_u32 s56, s56, {PHI}
v_lshlrev_b32 v{TM+1}, 8, v{n_}
v_lshl_add_u32 v{TM}, v{TM}, 4, v{TM+1}
v_add_u32 v{vW0}, s56, v{TM}""")
    a0 = TT
    F.add(f"""s_lshr_b32 s58, s{W}, 1
s_lshl_b32 s58, s58, 2
v_bfe_u32 v{a0}, v{vLANE}, 4, 1
v_and_b32 v{a0+1}, 3, v{vLANE}
v_lshl_add_u32 v{a0}, v{a0}, 2, v{a0+1}
v_bfe_u32 v{a0+1}, v{vLANE}, 2, 2
v_lshrrev_b32 v{a0+2}, 1, v{a0}
v_and_b32 v{a0+3}, 1, v{a0}
v_and_b32 v{a0+4}, 2, v{a0+2}
v_or_b32 v{a0+4}, v{a0+4}, v{a0+3}
v_and_b32 v{a0+5}, 1, v{a0+2}
s_bitcmp0_b32 s{W}, 0
s_cselect_b64 s[50:51], -1, 0
v_add_u32 v{a0+6}, 8, v{a0+2}
v_cndmask_b32 v{a0+4}, v{a0+6}, v{a0+4}, s[50:51]
v_cndmask_b32 v{a0+5}, v{a0+3}, v{a0+5}, s[50:51]
v_add_u32 v{a0+4}, s58, v{a0+4}
v_add_u32 v{a0+6}, 1, v{a0+2}
v_and_b32 v{a0+6}, 3, v{a0+6}
v_add3_u32 v{a0+6}, v{a0+6}, s58, 8
v_lshlrev_b32 v{a0+7}, 2, v{a0+1}
v_lshl_add_u32 v{a0+7}, v{hh}, 1, v{a0+7}
v_lshl_add_u32 v{a0+8}, v{hh}, 3, v{a0+1}
v_lshlrev_b32 v{a0+8}, 8, v{a0+8}
v_add_u32 v{a0+8}, {PHI}, v{a0+8}""")
    for rd, (va, vb) in enumerate(((vKA0, vKB0), (vKA1, vKB1))):
        F.add(f"""v_or_b32 v{a0+9}, {rd}, v{a0+7}
v_xor_b32 v{a0+10}, v{a0+4}, v{a0+9}
v_lshlrev_b32 v{a0+10}, 4, v{a0+10}
v_lshl_add_u32 v{a0+10}, v{a0+5}, 3, v{a0+10}
v_add_u32 v{va}, v{a0+10}, v{a0+8}
v_xor_b32 v{a0+10}, v{a0+6}, v{a0+9}
v_lshlrev_b32 v{a0+10}, 4, v{a0+10}
v_lshl_add_u32 v{a0+10}, v{a0+3}, 3, v{a0+10}
v_add_u32 v{vb}, v{a0+10}, v{a0+8}""")
        if rd: F.add(f"v_add_u32 v{va}, 1024, v{va}\nv_add_u32 v{vb}, 1024, v{vb}")
    F.add(f"""v_mul_u32_u24 v{a0}, 21, v{hh}
v_add_u32 v{a0}, v{a0}, v{n_}
v_lshlrev_b32 v{a0}, 4, v{a0}
v_mov_b32 v{a0+1}, {BIG}
v_cmp_gt_u32 vcc, 21, v{n_}
v_cndmask_b32 v{vKP}, v{a0+1}, v{a0}, vcc
v_cndmask_b32 v{vKP2}, v{a0+1}, v{vKP}, s[50:51]
v_lshlrev_b32 v{vCSR}, 2, v{n_}
v_mov_b32 v{a0}, 0
v_lshlrev_b32 v{a0+2}, 2, v{vLANE}
v_min_u32 v{a0+3}, 76, v{a0+2}
ds_write_b32 v{a0+3}, v{a0} offset:{L_KVZ}""")
    for r_ in (CF+1, CF+2, CF+3, CF+5, CF+6, CF+7): F.add(f"v_mov_b32 v{r_}, 0")
    lateregs = [vG0, vG1, vGS0, vGS1, vKF0, vKF1, vAFo, vAFo2, vA1, vA2, vA3]
    _sv = (vG0, vG1, vGS0, vGS1, vKF0, vKF1, vAFo, vAFo2, vA1, vA2, vA3)
    vG0, vG1, vGS0, vGS1, vKF0, vKF1, vAFo, vAFo2, vA1, vA2, vA3 = range(PHQ, PHQ + 11)
    F.add(f"""v_lshlrev_b32 v{vGS0}, 4, v0
v_add_u32 v{TM}, 4096, v{vGS0}
v_mov_b32 v{TM+1}, {BIG}
v_cmp_gt_u32 vcc, 164, v0
v_cndmask_b32 v{vGS1}, v{TM+1}, v{TM}, vcc""")
    for rnd, vd in enumerate((vG0, vG1)):
        F.add(f"""v_add_u32 v{a0}, {256*rnd}, v0
{vdiv(a0+1, a0, 210, 511)}
v_mul_u32_u24 v{a0+2}, 210, v{a0+1}
v_sub_u32 v{a0+2}, v{a0}, v{a0+2}
{vdiv(a0+3, a0+2, 42, 209)}
v_mul_u32_u24 v{a0+4}, 42, v{a0+3}
v_sub_u32 v{a0+4}, v{a0+2}, v{a0+4}
v_cmp_lt_u32 vcc, 20, v{a0+4}
v_subrev_u32 v{a0+5}, 21, v{a0+4}
v_cndmask_b32 v{a0+5}, v{a0+4}, v{a0+5}, vcc
v_cndmask_b32 v{a0+6}, 0, 1, vcc
v_and_b32 v{a0+7}, 2, v{a0+3}
v_add_u32 v{a0+7}, v{a0+7}, v{a0+6}
v_lshlrev_b32 v{a0+7}, 4, v{a0+7}
v_and_b32 v{a0+8}, 1, v{a0+3}
v_lshl_add_u32 v{a0+7}, v{a0+8}, 3, v{a0+7}
v_lshl_add_u32 v{a0+8}, v{a0+6}, 3, 64
v_cmp_eq_u32 vcc, 4, v{a0+3}
v_cndmask_b32 v{a0+7}, v{a0+7}, v{a0+8}, vcc
v_mul_u32_u24 v{a0+1}, 1680, v{a0+1}
v_mul_u32_u24 v{a0+5}, 80, v{a0+5}
v_add3_u32 v{a0+7}, v{a0+7}, v{a0+1}, v{a0+5}
v_mov_b32 v{a0+8}, {L_DUM - L_KVF}
v_cmp_gt_u32 vcc, 420, v{a0}
v_cndmask_b32 v{vd}, v{a0+8}, v{a0+7}, vcc""")
    F.add(f"""v_bfe_u32 v{a0}, v{n_}, 2, 1
v_lshrrev_b32 v{a0+1}, 3, v{n_}
v_and_b32 v{a0+2}, 3, v{n_}
v_lshl_add_u32 v{a0+1}, v{a0+1}, 2, v{a0+2}
v_mul_u32_u24 v{a0+2}, 1680, v{hh}
v_mul_u32_u24 v{a0+3}, 80, v{a0+1}
v_add_u32 v{a0+2}, v{a0+2}, v{a0+3}
v_mov_b32 v{a0+3}, {L_KVZ - L_KVF}
v_cmp_eq_u32 vcc, v{a0}, v{hh}
v_cndmask_b32 v{vKF0}, v{a0+3}, v{a0+2}, vcc
v_add_u32 v{a0+2}, 1280, v{a0+2}
v_cmp_gt_u32 s[50:51], 5, v{a0+1}
s_and_b64 vcc, vcc, s[50:51]
v_cndmask_b32 v{vKF1}, v{a0+3}, v{a0+2}, vcc
v_lshlrev_b32 v{a0}, 8, v{hh}
v_add_u32 v{vAFo}, v{vAFh}, v{a0}
v_mul_u32_u24 v{a0}, 504, v{hh}
v_sub_u32 v{vAFo2}, v{vAFh}, v{a0}
v_add_u32 v{vA1}, {AFRT}, v{vL16}
v_add_u32 v{vA2}, {2*AFRT}, v{vL16}
v_add_u32 v{vA3}, {3*AFRT}, v{vL16}
s_lshl4_add_u32 s50, s{J}, 0
s_mul_i32 s50, s50, {KVS}
s_add_u32 s50, s50, {KVP}
s_mul_i32 s51, s{G}, {KVS}
s_add_u32 s51, s51, s50
s_lshr_b32 s56, s{W}, 1
s_mul_i32 s56, s56, 3360
s_add_u32 s51, s51, s56
s_and_b32 s56, s{W}, 1
s_mul_i32 s56, s56, 4*672
s_add_u32 s51, s51, s56""")
    for k in range(11): F.add(f"v_accvgpr_write_b32 a{220+k}, v{PHQ+k}")
    vG0, vG1, vGS0, vGS1, vKF0, vKF1, vAFo, vAFo2, vA1, vA2, vA3 = _sv
    if fused:
        gate_pos(opt.get("b2pos", 40))
        need_bar("SB2")
        F.act(lambda prog: prep_b2_repack(prog, PP + 2, 46))
        def extra(prog):
            sn = prog.snapshot()
            prog.emit(f"s_cmp_lt_u32 s{RH}, 2\ns_cbranch_scc1 M_extra"); prog.raw("M_extra_back:")
        F.act(extra)
        gate_pos(opt.get("s0pos", 84))
        F.add(f"s_add_u32 s45, s41, {F_S0}")
        poll_issue(TM + 6, 45)
        F.delay(opt.get("s0delay", 10))
        poll_check(TM + 6, 45, "s0")
        d = arm_bar(); wait_bar(d)
        F.act(lambda prog: gates.__setitem__('S0', True)); mark("S0 passed")
    else:
        gates['S0'] = True
        gate_pos(60)
    F.add(f"buffer_load_dwordx4 v[{MF}:{MF+3}], v{TM+7}, s[{sWS}:{sWS+3}], s47 offen sc1")
    CG = AC2
    F.add(f"""v_lshlrev_b32 v{TM}, 3, v0
v_mov_b32 v{TM+1}, {BIG}
v_cmp_gt_u32 vcc, 160, v0
v_cndmask_b32 v{TM+2}, v{TM+1}, v{TM}, vcc
v_mov_b32 v{TM+1}, {L_DUM - L_CS}
v_cndmask_b32 v{TM+3}, v{TM+1}, v{TM}, vcc
s_mul_i32 s56, s{J}, 16*1280
s_add_u32 s45, s56, {CSP}""")
    for g2 in range(16):
        o = (g2 % 3) * 1280
        F.add(f"buffer_load_dwordx2 v[{CG+2*g2}:{CG+2*g2+1}], v{TM+2}, s[{sWS}:{sWS+3}], s45 offen offset:{o} sc1")
        if g2 % 3 == 2: F.add("s_add_u32 s45, s45, 3840")
    def wpdma(prog):
        prog.emit(f"s_mul_i32 s56, s{J}, 6144\ns_add_u32 s56, s56, {WPF}\ns_min_u32 s58, s{W}, 2\ns_lshl_b32 s58, s58, 11\ns_add_u32 m0, s58, {L_WP}\ns_add_u32 s56, s56, s58")
        for e in range(2): prog.emit(f"buffer_load_dwordx4 v{vL16}, s[{sWS}:{sWS+3}], s56 offen offset:{1024*e} sc1 lds", tok="WP")
    F.act(wpdma)
    if fused:
        F.add(f"s_lshl_b32 s45, s{C}, 8\ns_lshl2_add_u32 s45, s{RH}, s45\ns_add_u32 s45, s45, {FLG + F_S0B}")
        need_bar("PUBB"); flag_store(45); mark("S0b flag")
    F.delay(opt.get("csdelay", 14))
    def statchk(prog):
        prog.emit(f"v_cmp_ne_u32 vcc, s{TAG}, v{MF+3}"); prog.emit("s_cbranch_vccnz M_slow_st"); prog.raw("M_back_st:")
        slow.append(("st", f"buffer_load_dwordx4 v[{MF}:{MF+3}], v{TM+7}, s[{sWS}:{sWS+3}], s47 offen sc1", f"v_cmp_ne_u32 vcc, s{TAG}, v{MF+3}"))
    F.act(statchk)
    F.add(f"""v_mov_b32 v{vRS}, v{MF+1}
v_mov_b32 v{vS2}, v{MF+2}
v_mul_f32 v{vCP}, {LOG2E}, v{MF+1}
v_mul_f32 v{vCE}, {NLOG2E}, v{MF+1}
v_cmp_eq_u32 vcc, 0, v{hh}
v_cndmask_b32 v{MF}, 0, v{MF}, vcc
v_mov_b32 v{MF+1}, 0
v_mov_b32 v{MF+2}, 0
v_mov_b32 v{MF+3}, 0""")
    for g2 in range(1, 16): F.add(f"v_add_f32 v{CG}, v{CG}, v{CG+2*g2}\nv_add_f32 v{CG+1}, v{CG+1}, v{CG+2*g2+1}")
    F.add(f"""v_cvt_pk_bf16_f32 v{CG+2}, v{CG}, v{CG+1}
v_lshlrev_b32 v{CG+3}, 16, v{CG+2}
v_and_b32 v{CG+4}, 0xffff0000, v{CG+2}
v_sub_f32 v{CG}, v{CG}, v{CG+3}
v_sub_f32 v{CG+1}, v{CG+1}, v{CG+4}
v_cvt_pk_bf16_f32 v{CG}, v{CG}, v{CG+1}
v_and_b32 v{CG+1}, 0xffff0000, v{CG}
v_lshrrev_b32 v{CG+4}, 16, v{CG+4}
v_or_b32 v{CG+1}, v{CG+1}, v{CG+4}
v_and_b32 v{CG+2}, 0xffff, v{CG+2}
v_lshl_or_b32 v{CG}, v{CG}, 16, v{CG+2}""")
    F.add(f"ds_write_b64 v{TM+3}, v[{CG}:{CG+1}] offset:{L_CS}", tok="CS")
    need_bar("CS", "WP"); mark("CS ready")
    cfi = [0]
    def fold(tile, acc, first):
        b = CF + 4*(cfi[0] & 1); cfi[0] += 1
        return (f"ds_read_b32 v{b}, v{vCSR} offset:{L_CS + tile*128}", f"v_mfma_f32_32x32x16_bf16 v[{acc}:{acc+15}], v[{b}:{b+3}], v[{MF}:{MF+3}], {'0' if first else f'v[{acc}:{acc+15}]'}")
    def foldseq(items):
        it = [fold(*x) for x in items]
        F.add(it[0][0])
        for k in range(len(it)):
            if k + 1 < len(it): F.add(it[k+1][0])
            F.add(it[k][1])
    foldseq([(0, AC1, False), (2, AC1 + 32, False), (1, AC1 + 16, False), (3, AC1 + 48, False)])
    gate_pos(pos_c1 + 3)
    foldseq([(4 + tl, AC2 + 16*tl, False) for tl in range(3)])
    if not split: gate_pos(pos_c1 + 4); foldseq([(7, AC2 + 48, False)])
    for k, r in enumerate(lateregs): F.add(f"v_accvgpr_read_b32 v{r}, a{220+k}")
    F.act(lambda prog: [pool.append(f"a{220+4*k}") for k in range(3)])
    HO = TT
    for tt in range(2):
        silu_fill(F, AC1 + 16*tt, AC1 + 32 + 16*tt, TM, HO + 8*tt, vCE, vS2)
        for u in range(2): F.add(f"buffer_store_dwordx4 v[{HO+8*tt+4*u}:{HO+8*tt+4*u+3}], v{vAFh}, s[{sWS}:{sWS+3}], s49 offen offset:{1024*tt + 256*u} sc1", tok="H1")
    mark("h1 stored")
    F.act(lambda prog: gates.__setitem__('F3', True))
    pass
    P2 = dict(next=0)
    KS = [('h1', e) for e in range(8)] + [('h2', e) for e in range(4)] + [('o', e) for e in range(5)]
    regsA = {}; regsB = {}
    def rng(r): return f"{r[0]}[{int(r[1:])}:{int(r[1:])+3}]"
    def ks_setup(i, which):
        kind, e = KS[i]
        base, cnt, wmul = {'h1': (0, 8, 8), 'h2': (32, 4, 4), 'o': (48, 5, 5)}[kind]
        if cnt in (8, 4): s = f"s_add_u32 s12, s52, {e}\ns_and_b32 s12, s12, {cnt-1}\n"
        else: s = f"s_add_u32 s12, s53, {e}\ns_cmp_ge_u32 s12, 5\ns_cselect_b32 s13, 5, 0\ns_sub_u32 s12, s12, s13\n"
        s += f"s_mul_i32 s13, s{W}, {wmul}\ns_add_u32 s12, s12, s13\n" + (f"s_add_u32 s12, s12, {base}\n" if base else "")
        if which == 'A': return s + f"s_lshl_b32 s12, s12, 10\ns_add_u32 s6, s12, s54\n"
        return s + f"s_mul_i32 s12, s12, 5120\ns_add_u32 s7, s12, s55\n"
    def ld_text(i, which, k, r):
        if which == 'A':
            return (ks_setup(i, 'A') if k == 0 else "") + f"buffer_load_dwordx4 {rng(r)}, v{[vL16, vA1, vA2, vA3][k]}, s[{sWS}:{sWS+3}], s6 offen sc1"
        pre = ks_setup(i, 'B') if k == 0 else ("s_add_u32 s7, s7, 4096\n" if k == 4 else "")
        return pre + f"buffer_load_dwordx4 {rng(r)}, v{vL16}, s[{sWS}:{sWS+3}], s7 offen offset:{1024*(k % 4)} sc1"
    order = []
    npre = opt.get("npre", 12)
    for i in range(npre): order += [(i, 'B', k) for k in range(5)]
    for i in range(8):
        order += [(i, 'A', k) for k in range(4)]
        if i >= npre: order += [(i, 'B', k) for k in range(5)]
        if i >= 3: order += [(12 + i - 3, 'B', k) for k in range(5)]
    for i in range(8, 17):
        if npre <= i < 12: order += [(i, 'B', k) for k in range(5)]
        order += [(i, 'A', k) for k in range(4)]
    def p2_can():
        if P2['next'] >= len(order) or not pool: return False
        i, which, k = order[P2['next']]
        if which == 'B': return gates.get('S0b', False)
        return gates.get(KS[i][0], False)
    def p2_issue():
        i, which, k = order[P2['next']]; P2['next'] += 1
        r = pool.popleft(); (regsA if which == 'A' else regsB)[(i, k)] = r
        p.emit(ld_text(i, which, k, r))
    F.add(f"""s_and_b32 s52, s{RH}, 7
s_and_b32 s56, s{C}, 3
s_lshl1_add_u32 s52, s56, s52
s_and_b32 s53, s52, 3
s_mul_i32 s54, s{RH}, {4*AFRT}
s_add_u32 s54, s54, {AF}
s_mul_i32 s55, s{C}, 348160
s_add_u32 s55, s55, {B2F}""")
    if fused:
        F.add(f"s_lshl_b32 s45, s{C}, 8\ns_add_u32 s45, s45, {FLG + F_S0B}\nv_lshlrev_b32 v{TM}, 2, v{n_}\nv_cmp_gt_u32 vcc, 64, v0\nv_cndmask_b32 v{TM+5}, v{vFP}, v{TM}, vcc")
        svFP = vFP
        F.add(f"buffer_load_dword v{TM+6}, v{TM+5}, s[{sWS}:{sWS+3}], s45 offen sc1")
        F.delay(10)
        def chkb(prog):
            prog.emit(f"v_cmp_ne_u32 vcc, s{EXP}, v{TM+6}"); prog.emit("s_cbranch_vccnz M_slow_s0b"); prog.raw("M_back_s0b:")
            slow.append(("s0b", f"buffer_load_dword v{TM+6}, v{TM+5}, s[{sWS}:{sWS+3}], s45 offen sc1", f"v_cmp_ne_u32 vcc, s{EXP}, v{TM+6}"))
        F.act(chkb)
    F.add(f"s_add_u32 s45, s43, {F_H1}")
    need_bar("H1"); flag_store(45); mark("H1 flag")
    F.act(lambda prog: gates.__setitem__('S0b', True))
    gate_pos(pos_kv + 1)
    F.act(lambda prog: st.__setitem__('urg', opt.get('urg', 3)))
    BQ = TT
    WB = PHQ
    def wphi(src, dstP):
        F.add("\n".join(f"ds_read_b128 v[{WB+4*k}:{WB+4*k+3}], v{vL16} offset:{L_WP + k*1024}" for k in range(3)))
        for i in range(10): F.add(f"v_cvt_pk_bf16_f32 v{BQ+i}, v{src+2*i}, v{src+2*i+1}")
        F.add(f"v_mov_b32 v{BQ+10}, 0\nv_mov_b32 v{BQ+11}, 0")
        for idx in range(6):
            tp, s = idx // 3, idx % 3
            d = f"v[{dstP+16*tp}:{dstP+16*tp+15}]"
            F.add(f"v_mfma_f32_32x32x16_bf16 {d}, v[{WB+4*s}:{WB+4*s+3}], v[{BQ+4*s}:{BQ+4*s+3}], {'0' if s == 0 else d}")
            if idx < 3: F.add(f"ds_read_b128 v[{WB+4*s}:{WB+4*s+3}], v{vL16} offset:{L_WP + (idx+3)*1024}")
    wphi(AC2, PP)
    VV = AC2
    for i in range(10): F.add(f"v_mul_f32 v{AC2+20+2*i}, v{AC2+20+2*i}, v{vRS}\nv_mul_f32 v{AC2+21+2*i}, v{AC2+21+2*i}, v{vRS}\nv_cvt_pk_bf16_f32 v{VV+i}, v{AC2+20+2*i}, v{AC2+21+2*i}")
    F.add(f"v_mov_b32 v{VV+10}, 0x3f80\nv_mov_b32 v{VV+11}, 0")
    for e in range(3): F.add(f"v_xor_b32 v{TM+6}, {(9+e)<<4}, v{vW0}\nds_write_b128 v{TM+6}, v[{VV+4*e}:{VV+4*e+3}]", tok="PH")
    PK = AC2 + 12
    softmax_fill(F, PP, TT, False, PK, None, TM, vCP, vCE)
    for e in range(5): F.add(f"v_xor_b32 v{TM+6}, {(e if e < 4 else 8)<<4}, v{vW0}\nds_write_b128 v{TM+6}, v[{PK+4*e}:{PK+4*e+3}]", tok="PH")
    mark("PH written")
    F.act(lambda prog: st.__setitem__('urg', opt.get('urg2', 0)))
    dPH = arm_bar("PH")
    if split: foldseq([(7, AC2 + 48, False)])
    gate_pos(pos_q + 2)
    foldseq([(8, AC1, False), (9, AC1 + 16, False)])
    wphi(AC2 + 40, PP)
    wait_bar(dPH)
    KD = AC2
    def kvread(ks):
        b = AC2 + 16 + 8*(ks % 4)
        return (f"ds_read_b64_tr_b16 v[{b}:{b+1}], v{vKA0} offset:{ks*4096}\nds_read_b64_tr_b16 v[{b+2}:{b+3}], v{vKA1} offset:{ks*4096}\n"
                f"ds_read_b64_tr_b16 v[{b+4}:{b+5}], v{vKB0} offset:{ks*4096}\nds_read_b64_tr_b16 v[{b+6}:{b+7}], v{vKB1} offset:{ks*4096}")
    for ks in range(3): F.add(kvread(ks))
    for ks in range(8):
        b = AC2 + 16 + 8*(ks % 4)
        F.add(f"v_mfma_f32_32x32x16_bf16 v[{KD}:{KD+15}], v[{b}:{b+3}], v[{b+4}:{b+7}], {'0' if ks == 0 else f'v[{KD}:{KD+15}]'}")
        if ks + 3 < 8: F.add(kvread(ks + 3))
    Fq = Filler(); softmax_fill(Fq, PP, TT, True, PHQ, VS1, TM, vCP, vCE)
    for _ in range(14): F.q.append(Fq.q.popleft())
    F.add(f"buffer_store_dwordx4 v[{KD}:{KD+3}], v{vKP}, s[{sWS}:{sWS+3}], s51 offen sc1", tok="KP")
    for e in range(1, 4): F.add(f"buffer_store_dwordx4 v[{KD+4*e}:{KD+4*e+3}], v{vKP2}, s[{sWS}:{sWS+3}], s51 offen offset:{672*e} sc1", tok="KP")
    mark("kv published")
    F.add(f"s_add_u32 s45, s44, {F_H1}")
    poll_issue(TM + 7, 45)
    nq = opt.get("nq1", 110)
    for _ in range(nq): F.q.append(Fq.q.popleft())
    poll_check(TM + 7, 45, "h1")
    F.add(f"s_add_u32 s45, s42, {F_S1}")
    need_bar("KP"); flag_store(45); mark("S1 flag")
    F.act(lambda prog: gates.__setitem__('h1', True))
    while Fq.q: F.q.append(Fq.q.popleft())
    mark("q softmax done")
    bar(0)
    for e in range(4): xread(0, e)
    for i in range(PD): bread(i)
    ST("bar0")
    CAP = opt.get("cap", 6)
    lastv = -10
    for i in range(NM):
        x = seq[i]; b = BA + 4*(i % NB)
        if stages[x['t']][0] == 'g2' and x['sf'] and stages[x['t']][1] == 0: assert gates.get('F3'), "C1 epilogue late"
        if i % 2 == 0 and i + 1 < NM: p.wait_regs(regs_of(f"a[{BA+4*((i+1) % NB)}:{BA+4*((i+1) % NB)+3}]"))
        acc = x['acc']; s = x['s']
        p.emit(f"v_mfma_f32_32x32x16_bf16 v[{acc}:{acc+15}], a[{b}:{b+3}], a[{XA+4*s}:{XA+4*s+3}], {'0' if x['first'] else f'v[{acc}:{acc+15}]'}")
        k0 = len(p.out); st['pos'] = i + 1
        if i + 1 in (160, pos_kv, 320): ST(f"m{i+1}")
        cap = (opt.get('cap1', 10) if i < 160 else CAP + st.get('urg', 0)) - (1 if i % 2 else 0)
        if i + PD < NM:
            if seq[i + PD]['sf']: bar(seq[i + PD]['t']); cap -= opt.get("barslack", 2)
            bread(i + PD)
        if i < 160:
            m = i // 16; f = i % 16
            if m + 1 < 10 and 8 <= f < 12: xread(m + 1, f - 8)
        if i >= NM - 80 and i % 2 == 1 and s >= 1: pool.append(f"a{XA+4*(s-1)}")
        while vq and vq[0][0] == 'gate' and gates.get(vq[0][1]): vq.popleft()
        gapv = 1 if i < 32 else 2
        if vq and vq[0][0] != 'gate' and i - lastv >= gapv:
            tx, tok = vq.popleft(); ls = tx.split("\n")
            for l in ls[:-1]: p.emit(l)
            p.emit(ls[-1], tok=tok); lastv = i
        elif i - lastv >= opt.get("pfgap", 2) and p2_can():
            p2_issue(); lastv = i
        run(k0, cap)
    assert not vq
    pool.append(f"a{XA+156}")
    for k in range(NB): pool.append(f"a{BA+4*k}")
    log(f"phase1 end: filler left cost {F.cost()} items {len(F.q)}; p2 loads issued {P2['next']}/{len(order)}; nops {p.stats['nop']}")
    ST("m400")
    st['pos'] = 10**6
    silu_fill(F, AC1, AC1 + 16, TM, HO, vCE, vS2)
    F.add(f"s_lshl_b32 s56, s{J}, 10\ns_add_u32 s56, s56, s48\ns_add_u32 s49, s56, 32768")
    for u in range(2): F.add(f"buffer_store_dwordx4 v[{HO+4*u}:{HO+4*u+3}], v{vAFh}, s[{sWS}:{sWS+3}], s49 offen offset:{256*u} sc1", tok="H2")
    mark("h2 stored")
    F.add(f"s_add_u32 s45, s41, {F_S1}")
    poll_issue(TM + 7, 45)
    F.delay(opt.get("d_s1", 20))
    poll_check(TM + 7, 45, "s1")
    F.add(f"s_add_u32 s45, s43, {F_H2}")
    need_bar("H2"); flag_store(45); mark("H2 flag")
    GB = [AC1 + 4*k for k in range(8)] + [PP + 4*k for k in range(8)] + [156 + 4*k for k in range(4)]
    NG = len(GB); acc0, acc1 = TT + 8, TT + 12
    lds_ = [(g2, rnd) for g2 in range(16) for rnd in range(2)]
    def gload(i):
        g2, rnd = lds_[i]; b = GB[i % NG]
        return (f"s_add_u32 s50, s50, {KVS}\n" if rnd == 0 and g2 > 0 else "") + f"buffer_load_dwordx4 v[{b}:{b+3}], v{vGS0 if rnd == 0 else vGS1}, s[{sWS}:{sWS+3}], s50 offen sc1"
    for i in range(NG): F.add(gload(i))
    F.delay(opt.get("d_g", 20))
    for i in range(2, 32):
        g2, rnd = lds_[i]; b = GB[i % NG]; a = acc0 if rnd == 0 else acc1
        for e in range(4): F.add(f"v_add_f32 v{a+e}, v{GB[rnd] + e if g2 == 1 else a+e}, v{b+e}")
        if i >= 3 and NG + i - 3 < 32: F.add(gload(NG + i - 3))
    for a, vd in ((acc0, vG0), (acc1, vG1)):
        F.add(f"v_cvt_pk_bf16_f32 v{a}, v{a}, v{a+1}\nv_cvt_pk_bf16_f32 v{a+1}, v{a+2}, v{a+3}")
        F.add(f"ds_write_b64 v{vd}, v[{a}:{a+1}] offset:{L_KVF}", tok="KF")
    F.add(f"s_add_u32 s45, s44, {F_H2}")
    poll_issue(TM + 7, 45)
    need_bar("KF"); mark("KF ready")
    KB = AC1; OD = PP
    kb = lambda k: AC1 + 4*k if k < 8 else 156 + 4*(k - 8)
    for s in range(5):
        for tp in (1, 0): k = 2*s + tp; F.add(f"ds_read_b128 v[{kb(k)}:{kb(k)+3}], v{vKF1 if tp else vKF0} offset:{L_KVF + 16*s}")
    for s in range(5):
        for tp in (1, 0):
            k = 2*s + tp; d = f"v[{OD+16*tp}:{OD+16*tp+15}]"
            F.add(f"v_mfma_f32_32x32x16_bf16 {d}, v[{kb(k)}:{kb(k)+3}], v[{PHQ+4*s}:{PHQ+4*s+3}], {'0' if s == 0 else d}")
    F.add(f"v_add_f32 v{TM}, v{OD+20}, v{VS1}\nv_rcp_f32 v{TM}, v{TM}\ns_mul_i32 s56, s{J}, 1280\ns_add_u32 s56, s56, s48\ns_add_u32 s49, s56, 49152")
    for i in range(10): F.add(f"v_mul_f32 v{OD+2*i}, v{OD+2*i}, v{TM}\nv_mul_f32 v{OD+2*i+1}, v{OD+2*i+1}, v{TM}\nv_cvt_pk_bf16_f32 v{PHQ+i}, v{OD+2*i}, v{OD+2*i+1}")
    F.add(f"buffer_store_dwordx4 v[{PHQ}:{PHQ+3}], v{vAFo}, s[{sWS}:{sWS+3}], s49 offen sc1", tok="O")
    F.add(f"buffer_store_dwordx4 v[{PHQ+4}:{PHQ+7}], v{vAFo}, s[{sWS}:{sWS+3}], s49 offen offset:256 sc1", tok="O")
    F.add(f"buffer_store_dwordx2 v[{PHQ+8}:{PHQ+9}], v{vAFo2}, s[{sWS}:{sWS+3}], s49 offen offset:512 sc1", tok="O")
    mark("o stored")
    poll_check(TM + 7, 45, "h2")
    need_bar(); F.act(lambda prog: gates.__setitem__('h2', True)); mark("h2 open")
    F.act(lambda prog: [pool.append(f"v{r}") for r in ([AC1 + 4*k for k in range(8)] + [PP + 4*k for k in range(8)] + [156 + 4*k for k in range(4)])])
    XR = TT
    F.add(f"""s_mov_b32 s{sW}, s18
s_and_b32 s{sW+1}, s19, 0xffff
s_mov_b32 s{sW+2}, 2048*1280
s_mov_b32 s{sW+3}, 0x20000
s_lshl2_add_u32 s46, s{RH}, s{W}
s_mul_i32 s46, s46, 16*1280
s_mul_i32 s56, s{C}, 160
s_add_u32 s46, s46, s56
v_and_b32 v{TM+4}, 15, v{vLANE}
v_mul_u32_u24 v{TM+4}, 1280, v{TM+4}
v_lshrrev_b32 v{TM+5}, 4, v{vLANE}
v_mul_u32_u24 v{TM+5}, 40, v{TM+5}
v_add_u32 v{TM+4}, v{TM+4}, v{TM+5}
buffer_load_dwordx4 v[{XR}:{XR+3}], v{TM+4}, s[{sX}:{sX+3}], s46 offen
buffer_load_dwordx4 v[{XR+4}:{XR+7}], v{TM+4}, s[{sX}:{sX+3}], s46 offen offset:16
buffer_load_dwordx2 v[{XR+8}:{XR+9}], v{TM+4}, s[{sX}:{sX+3}], s46 offen offset:32""")
    F.delay(opt.get("d_o", 10))
    F.add(f"s_add_u32 s45, s43, {F_O}")
    need_bar("O"); flag_store(45); mark("O flag")
    F.add(f"s_add_u32 s45, s44, {F_O}")
    F.delay(opt.get("d_o2", 30))
    poll_issue(TM + 7, 45)
    F.delay(opt.get("d_o3", 10))
    poll_check(TM + 7, 45, "o")
    need_bar(); F.act(lambda prog: gates.__setitem__('o', True)); mark("o open")
    def force():
        x = F.q[0]
        if isinstance(x, list):
            if x[0] == 'gate' and not x[1](): bar("x")
            F.q.popleft(); return
        F.q.popleft()
        if callable(x): x(p)
        else: p.emit(x); glue(x)
    def bar_if_wanted():
        if F.q and isinstance(F.q[0], list) and F.q[0][0] == 'gate' and not F.q[0][1](): bar("x")
    cnt = 0
    for i in range(17):
        need = [(i, 'A', k) for k in range(4)] + [(i, 'B', k) for k in range(5)]
        while any(((a, k) not in (regsA if w_ == 'A' else regsB)) for a, w_, k in need):
            if p2_can(): p2_issue()
            else: force()
        if i in (0, 8, 12): ST(f"k{i}")
        for rt in range(4):
            for t in range(5):
                d = f"v[{ACC+20*rt+4*t}:{ACC+20*rt+4*t+3}]"
                p.emit(f"v_mfma_f32_16x16x32_bf16 {d}, {rng(regsB[(i,t)])}, {rng(regsA[(i,rt)])}, {'0' if i == 0 else d}")
                k0 = len(p.out); cnt += 1; st['pos'] = 10**6 + cnt
                if cnt % opt.get("p2gap", 2) == 0 and p2_can(): p2_issue()
                else:
                    bar_if_wanted(); run(k0, opt.get("cap2", 3))
            pool.append(regsA[(i, rt)])
        for t in range(5): pool.append(regsB[(i, t)])
    while F.q: force()
    ST("k17")
    RD = 156; RED = RING
    p.emit("s_nop 7")
    vR = vL16
    sn = p.snapshot()
    for w in range(4):
        p.emit(f"s_cmp_lg_u32 s{W}, {w}\ns_cbranch_scc1 M_w{w}")
        for k in range(1, 4):
            rt = (w + k) & 3
            for t in range(5):
                d = ACC + 20*rt + 4*t; off = RED + (rt*3 + k - 1)*5120 + t*1024
                p.emit(f"ds_write_b128 v{vL16 if off < 65536 else vL16b}, v[{d}:{d+3}] offset:{off & 0xffff}")
        if w != 0:
            for r in range(20): p.emit(f"v_mov_b32 v{ACC+r}, v{ACC+20*w+r}")
        p.emit("s_waitcnt lgkmcnt(0)")
        p.raw(f"M_w{w}:")
        p.restore(sn)
    p.emit("s_barrier")
    p.emit(f"s_mul_i32 s56, s{W}, 15360\ns_add_u32 s56, s56, {RED}\nv_add_u32 v{TM+5}, s56, v{vL16}")
    RDB = 96
    for k in range(3):
        for t in range(5): b = RDB + 20*k + 4*t; p.emit(f"ds_read_b128 v[{b}:{b+3}], v{TM+5} offset:{k*5120 + t*1024}")
    XU = PP
    for d in range(10): p.emit(f"v_lshlrev_b32 v{XU+2*d}, 16, v{XR+d}\nv_and_b32 v{XU+2*d+1}, 0xffff0000, v{XR+d}")
    for r in range(0, 20, 2): p.emit(f"v_pk_add_f32 v[{ACC+r}:{ACC+r+1}], v[{ACC+r}:{ACC+r+1}], v[{XU+r}:{XU+r+1}]")
    for k in range(3):
        for r in range(0, 20, 2): p.emit(f"v_pk_add_f32 v[{ACC+r}:{ACC+r+1}], v[{ACC+r}:{ACC+r+1}], v[{RDB+20*k+r}:{RDB+20*k+r+1}]")
    for d in range(10): p.emit(f"v_cvt_pk_bf16_f32 v{XR+d}, v{ACC+2*d}, v{ACC+2*d+1}")
    OS = opt.get("outsc", "")
    p.emit(f"buffer_store_dwordx4 v[{XR}:{XR+3}], v{TM+4}, s[{sW}:{sW+3}], s46 offen{OS}\nbuffer_store_dwordx4 v[{XR+4}:{XR+7}], v{TM+4}, s[{sW}:{sW+3}], s46 offen offset:16{OS}\nbuffer_store_dwordx2 v[{XR+8}:{XR+9}], v{TM+4}, s[{sW}:{sW+3}], s46 offen offset:32{OS}")
    ST("end"); ST.flush(sWS, AC1)
    p.emit(f"s_cmp_lg_u32 s2, 0\ns_cbranch_scc1 M_end\ns_mov_b32 s56, {EPOCH}\nv_mov_b32 v{TM}, s{TAG}\nbuffer_store_dword v{TM}, v{vFS}, s[{sWS}:{sWS+3}], s56 offen")
    p.raw("M_end:")
    p.emit("s_endpgm")
    for nm, ld, cmpi in slow:
        p.raw(f"M_slow_{nm}:"); p.raw("s_mov_b32 s68, 0"); p.raw(f"M_spin_{nm}:")
        p.raw(ld); p.raw("s_waitcnt vmcnt(0)"); p.raw(cmpi); p.raw("s_add_u32 s68, s68, 1"); p.raw(f"s_cbranch_vccz M_back_{nm}")
        p.raw("s_cmp_lt_u32 s68, 0x4000"); p.raw(f"s_cbranch_scc1 M_spin_{nm}"); p.raw(f"s_branch M_back_{nm}")
    if fused:
        q = Prog(); q.raw("M_extra:")
        q.emit("s_waitcnt lgkmcnt(0)\ns_barrier")
        q.emit(f"s_lshl1_add_u32 s46, s{RH}, 64")
        prep_b2_issue(q, PP, 46); q.emit("s_waitcnt vmcnt(0)\ns_barrier"); prep_b2_repack(q, PP + 2, 46)
        q.emit("s_waitcnt vmcnt(0) lgkmcnt(0)\ns_branch M_extra_back")
        p.out += q.out
    log(f"main: instrs {len(p.out)} nops {p.stats['nop']}")
    return name, p, kd(name, 512, 256), (256, 256, LDS_N)

HEAD = open("cdna_kernels/" + NAME + ".s.ref").read().split("; Override launch")[0]
def build(opt={}):
    if opt.get("fused"):
        name, p, k, (g, b, lds) = gen_main(opt)
        return HEAD + f"; @launch grid=({g},1,1) block=({b},1,1) lds={lds}\n" + '.amdgcn_target "amdgcn-amd-amdhsa--gfx950"\n.text\n' + p.text() + '.section .rodata,"a"\n.p2align 6\n' + k
    ks = [gen_prep(opt), gen_main(opt)]
    s = HEAD
    for name, p, k, (g, b, lds) in ks: s += f"; @launch kernel={name} grid=({g},1,1) block=({b},1,1) lds={lds}\n"
    s += '.amdgcn_target "amdgcn-amd-amdhsa--gfx950"\n.text\n'
    for name, p, k, _ in ks: s += p.text()
    s += '.section .rodata,"a"\n'
    for name, p, k, _ in ks: s += ".p2align 6\n" + k
    return s
if __name__ == "__main__":
    out = sys.argv[1]
    opt = eval(sys.argv[2]) if len(sys.argv) > 2 else {}
    open(out, "w").write(build(opt))
```

```python
import re
from collections import deque

REG_RE = re.compile(r'(?<![\w.])([vas])(\d+)(?![\w\[])|(?<![\w.])([vas])\[(\d+):(\d+)\]|(?<![\w.])(vcc|exec|m0|scc)(?![\w])')

def regs_of(s):
    out = []
    for m in REG_RE.finditer(s):
        if m.group(1):
            out.append(m.group(1) + m.group(2))
        elif m.group(3):
            out += [m.group(3) + str(i) for i in range(int(m.group(4)), int(m.group(5)) + 1)]
        else:
            out.append(m.group(6))
    return out

def split_ops(s):
    ops = []; depth = 0; cur = ''
    for ch in s:
        if ch in '[(': depth += 1
        if ch in '])': depth -= 1
        if ch == ',' and depth == 0:
            ops.append(cur.strip()); cur = ''
        else:
            cur += ch
    if cur.strip(): ops.append(cur.strip())
    return ops

TRANS = ('v_exp_f32', 'v_log_f32', 'v_rcp_f32', 'v_rsq_f32', 'v_sqrt_f32', 'v_sin_f32', 'v_cos_f32', 'v_rcp_iflag_f32')
SCC_W = ('s_add_u32','s_addc_u32','s_sub_u32','s_subb_u32','s_add_i32','s_sub_i32','s_lshl_b32','s_lshr_b32','s_lshl_b64','s_lshr_b64','s_ashr_i32',
         's_and_b32','s_and_b64','s_or_b32','s_or_b64','s_xor_b32','s_xor_b64','s_andn2_b64','s_andn2_b32','s_not_b32','s_min_u32','s_max_u32','s_addk_i32',
         's_and_saveexec_b64','s_or_saveexec_b64','s_bfe_u32','s_lshl1_add_u32','s_lshl2_add_u32','s_lshl3_add_u32','s_lshl4_add_u32')

class I:
    __slots__ = ('text','op','kind','r','w','tok','waits','cost','mf','note','srcA','srcC','dst','wide','lat')
    def __init__(self, text, tok=None, waits=None, lat=None):
        self.text = text.strip(); self.tok = tok; self.waits = waits or []; self.note = ''
        t = self.text
        m = re.match(r'(\S+)\s*(.*)', t)
        op = m.group(1); rest = m.group(2)
        self.op = op
        for sfx in ('_e32','_e64','_dpp'):
            if op.endswith(sfx): op = op[:-len(sfx)]
        ops = split_ops(rest)
        r = []; w = []; kind = None; self.mf = 0; self.srcA = []; self.srcC = []; self.dst = []; self.wide = False
        R = lambda k: regs_of(ops[k]) if k < len(ops) else []
        allr = lambda k: [x for o in ops[k:] for x in regs_of(o)]
        if t.endswith(':'):
            kind = 'label'
        elif op.startswith('.') or op.startswith(';'):
            kind = 'dir'
        elif op.startswith('v_mfma'):
            kind = 'mfma'; self.mf = 8 if '32x32x16' in op else 4
            assert '32x32x16' in op or '16x16x32' in op
            w = R(0); self.srcA = R(1) + R(2); self.srcC = R(3); r = self.srcA + self.srcC + ['exec']
        elif op.startswith('v_cmp'):
            kind = 'valu'; w = R(0); r = allr(1) + ['exec']
        elif op in ('v_readfirstlane_b32','v_readlane_b32'):
            kind = 'valu'; w = R(0); r = allr(1) + ['exec']
        elif op.startswith('v_permlane') and 'swap' in op:
            kind = 'valu'; w = R(0) + R(1); r = R(0) + R(1) + ['exec']
        elif op.startswith('v_'):
            kind = 'trans' if op in TRANS else 'valu'
            w = R(0); r = allr(1) + ['exec']
            if op in ('v_fmac_f32','v_dot2c_f32_bf16','v_writelane_b32','v_pk_fmac_f16') or 'row_' in t or 'quad_perm' in t:
                r += R(0)
            if op in ('v_add_co_u32','v_sub_co_u32','v_addc_co_u32','v_subb_co_u32'):
                w += R(1); r = allr(2) + ['exec']
            if op == 'v_nop': kind = 'nop'
        elif op.startswith('ds_read') or op.startswith('ds_bpermute') or op.startswith('ds_swizzle'):
            kind = 'dsr'; w = R(0); r = allr(1) + ['exec']
        elif op.startswith('ds_write'):
            kind = 'dsw'; r = allr(0) + ['exec']
            if 'addtid' in op: r.append('m0')
        elif op.startswith('buffer_load') or op.startswith('global_load'):
            if re.search(r'\blds\b', rest) or '_lds_' in op:
                kind = 'dma'; r = allr(0) + ['m0','exec']
            else:
                kind = 'vld'; w = R(0); r = allr(1) + ['exec']
        elif op.startswith('buffer_store') or op.startswith('global_store') or op.startswith('buffer_atomic') or op.startswith('global_atomic'):
            kind = 'vst'; r = allr(0) + ['exec']
            self.wide = ('x3' in op or 'x4' in op)
            self.dst = R(0) if op.startswith('buffer') else R(1)
        elif op in ('buffer_wbl2','buffer_inv'):
            kind = 'vst'
        elif op.startswith('s_load') or op.startswith('s_buffer_load') or op in ('s_memtime','s_memrealtime'):
            kind = 'smem'; w = R(0); r = allr(1)
        elif op == 's_waitcnt': kind = 'wait'
        elif op == 's_barrier': kind = 'barrier'
        elif op == 's_nop': kind = 'nop'
        elif op in ('s_endpgm','s_branch','s_setprio','s_sleep','s_setpc_b64'):
            kind = 'ctl'; r = allr(0)
        elif op.startswith('s_cbranch'):
            kind = 'ctl'; r = ['scc'] if 'scc' in op else (['vcc'] if 'vcc' in op else ['exec'])
        elif op.startswith('s_cmp') or op.startswith('s_bitcmp'):
            kind = 'salu'; r = allr(0); w = ['scc']
        elif op.startswith('s_'):
            kind = 'salu'; w = R(0); r = allr(1)
            if op in SCC_W: w.append('scc')
            if op in ('s_addc_u32','s_subb_u32','s_cselect_b32','s_cselect_b64','s_cmov_b32'): r.append('scc')
            if 'saveexec' in op: w.append('exec'); r.append('exec')
            if op in ('s_addk_i32','s_mulk_i32','s_cmov_b32'): r += R(0)
        else:
            raise ValueError('unknown instr: ' + t)
        self.kind = kind; self.r = set(r); self.w = set(w)
        self.cost = {'trans': 2, 'valu': 1, 'dsr': 1, 'dsw': 1, 'vld': 3, 'vst': 3, 'dma': 3, 'mfma': 0, 'salu': 0.5, 'nop': 1}.get(kind, 0)
        self.lat = lat
    def states(self):
        if self.kind in ('label','dir'): return 0
        if self.op == 's_nop': return int(self.text.split()[1], 0) + 1
        return 1
    def __repr__(self): return self.text

def is_valu(i): return i.kind in ('valu','trans')
def vregs(s): return {x for x in s if x[0] in 'va' and x not in ('vcc',)}
def sregs(s): return {x for x in s if (x[0] == 's' and x != 'scc') or x == 'vcc'}

def needed_states(hist, n):
    need = 0; dist = 0
    nv_r = vregs(n.r); nv_w = vregs(n.w); ns_r = sregs(n.r)
    for p in reversed(hist):
        if dist >= 20: break
        req = 0
        if p.kind == 'mfma':
            D = p.w; big = p.mf == 8
            if n.kind == 'mfma':
                if D & set(n.srcA): req = max(req, 12 if big else 8)
                c = set(n.srcC)
                if D & c:
                    if not (D == c and p.mf == n.mf): req = max(req, 10 if big else 6)
                elif D & n.w: req = max(req, 10 if big else 6)
            elif is_valu(n) or n.kind in ('dsr','dsw','vld','vst','dma'):
                if D & (nv_r | nv_w): req = max(req, 12 if big else 8)
            if is_valu(n) and (set(p.srcC) & nv_w): req = max(req, 7 if big else 3)
            if n.kind in ('dsr','vld') and (set(p.srcC) & nv_w): req = max(req, 7 if big else 3)
        elif is_valu(p):
            pv = vregs(p.w); ps = sregs(p.w)
            if p.op.startswith('v_dot') and n.op != p.op and (pv & (nv_r | nv_w)): req = max(req, 3)
            if n.kind == 'mfma' and (pv & nv_r): req = max(req, 2)
            if n.kind == 'mfma' and 'exec' in p.w: req = max(req, 4)
            if is_valu(n):
                if p.kind == 'trans' and n.kind != 'trans' and (pv & (nv_r|nv_w)): req = max(req, 1)
                if p.kind == 'trans' and n.kind == 'trans' and (pv & nv_r): req = max(req, 1)
                if n.op.startswith('v_permlane') and (pv & nv_r): req = max(req, 2)
                if ('row_' in n.text or 'quad_perm' in n.text) and (pv & nv_r): req = max(req, 2)
                if n.op.startswith('v_readfirstlane') or n.op.startswith('v_readlane'):
                    if pv & nv_r: req = max(req, 1)
                    if ps & ns_r: req = max(req, 4)
                if ps & ns_r: req = max(req, 2)
            if p.kind == 'trans' and n.kind in ('dsw','vst','dsr','vld','dma') and (pv & nv_r): req = max(req, 1)
            if n.kind in ('vld','vst','dma') and (ps & ns_r): req = max(req, 5)
            if n.kind in ('salu','ctl') and (ps & (ns_r | set(n.r))): req = max(req, 1)
        elif p.kind == 'salu':
            if 'm0' in p.w and (n.kind == 'dma' or 'addtid' in n.op): req = max(req, 1)
        elif p.kind == 'vst' and p.wide:
            if set(p.dst) & nv_w: req = max(req, 2 if is_valu(n) else 1)
        need = max(need, req - dist)
        dist += p.states()
    return need

class Prog:
    def __init__(self):
        self.out = []
        self.vm = deque()
        self.lg = deque()
        self.smem = set()
        self.nsm = 0
        self.auto = True
        self.stats = {'nop': 0}
    def raw(self, text):
        self.m0txt = None
        self.out.append(I(text))
    def _wait(self, vm=None, lg=None):
        parts = []
        if vm is not None:
            vm = min(vm, 63)
            if vm < len(self.vm):
                parts.append(f'vmcnt({vm})')
                while len(self.vm) > vm: self.vm.popleft()
        if lg is not None:
            if self.nsm: lg = 0
            lg = min(lg, 15)
            if lg < len(self.lg) or (lg == 0 and self.nsm):
                parts.append(f'lgkmcnt({lg})')
                while len(self.lg) > lg: self.lg.popleft()
                if lg == 0: self.smem = set(); self.nsm = 0
        if parts:
            self.out.append(I('s_waitcnt ' + ' '.join(parts)))
    def pending(self, n):
        touch = n.r | n.w
        vm = None; lg = None
        for idx, (dst, tok) in enumerate(self.vm):
            if (dst & touch) or (tok is not None and tok in n.waits): vm = len(self.vm) - idx - 1
        for idx, (dst, tok) in enumerate(self.lg):
            if (dst & touch) or (tok is not None and tok in n.waits): lg = len(self.lg) - idx - 1
        if self.smem & touch: lg = 0
        return vm, lg
    def emit(self, x, tok=None, waits=None):
        if isinstance(x, str):
            lines = [l for l in x.strip().split('\n') if l.strip()]
            if len(lines) > 1:
                assert tok is None and waits is None
                for l in lines: self.emit(l)
                return
            x = I(lines[0], tok, waits)
        n = x
        if n.kind == 'salu' and n.w - {'scc'} == {'m0'}:
            if getattr(self, 'm0txt', None) == n.text: return
            self.m0txt = n.text; self.m0src = set(n.r)
        elif n.kind in ('label', 'ctl') or (getattr(self, 'm0txt', None) and (n.w & self.m0src)):
            self.m0txt = None
        if n.kind == 'wait':
            m = re.search(r'vmcnt\((\d+)\)', n.text)
            if m:
                while len(self.vm) > int(m.group(1)): self.vm.popleft()
            m = re.search(r'lgkmcnt\((\d+)\)', n.text)
            if m:
                k = int(m.group(1))
                while len(self.lg) > k: self.lg.popleft()
                if k == 0: self.smem = set(); self.nsm = 0
            self.out.append(n); return
        vm, lg = self.pending(n)
        self._wait(vm, lg)
        if n.kind in ('vld','vst','dma') and len(self.vm) >= 63:
            self._wait(vm=62)
        if n.kind in ('dsr','dsw') and len(self.lg) >= 15:
            self._wait(lg=13)
        k = needed_states(self.out[-24:], n)
        while k > 0:
            c = min(k, 16); self.out.append(I(f's_nop {c-1}')); self.stats['nop'] += c; k -= c
        self.out.append(n)
        if n.kind == 'vld': self.vm.append((set(n.w), n.tok))
        elif n.kind in ('vst','dma'): self.vm.append((set(), n.tok))
        elif n.kind == 'dsr': self.lg.append((set(n.w), n.tok))
        elif n.kind == 'dsw': self.lg.append((set(), n.tok))
        elif n.kind == 'smem': self.smem |= n.w; self.nsm += 1
    def wait_tok(self, *toks):
        vm = None; lg = None
        for idx, (dst, tok) in enumerate(self.vm):
            if tok in toks: vm = len(self.vm) - idx - 1
        for idx, (dst, tok) in enumerate(self.lg):
            if tok in toks: lg = len(self.lg) - idx - 1
        self._wait(vm, lg)
    def wait_regs(self, regs):
        regs = set(regs); vm = None; lg = None
        for idx, (dst, tok) in enumerate(self.vm):
            if dst & regs: vm = len(self.vm) - idx - 1
        for idx, (dst, tok) in enumerate(self.lg):
            if dst & regs: lg = len(self.lg) - idx - 1
        self._wait(vm, lg)
    def snapshot(self): return (deque(self.vm), deque(self.lg), set(self.smem), self.nsm)
    def restore(self, sn): self.vm, self.lg, self.smem, self.nsm = deque(sn[0]), deque(sn[1]), set(sn[2]), sn[3]
    def join(self, sn, nmin, tok):
        self.restore(sn); self.lg = deque(); self.smem = set(); self.nsm = 0
        for _ in range(nmin): self.vm.append((set(), tok))
    def cost_since(self, k):
        c = 0
        for i in self.out[k:]:
            if i.kind in ('label', 'dir', 'mfma'): continue
            if i.kind == 'trans': c += 2
            elif i.kind in ('vld', 'vst', 'dma'): c += 3
            elif i.kind == 'salu': c += 0.5
            elif i.kind == 'nop': c += max(1, i.states() * 0.5)
            else: c += 1
        return c
    def wait_all(self, vm=True, lg=True):
        self._wait(0 if vm else None, 0 if lg else None)
    def ready(self, n, slack=0):
        return needed_states(self.out[-24:], n) <= slack
    def text(self):
        L = []
        for i in self.out:
            L.append(i.text if i.kind in ('label','dir') else '    ' + i.text)
        return '\n'.join(L) + '\n'

class Filler:
    def __init__(self): self.q = deque()
    def add(self, text, tok=None, waits=None):
        for l in text.strip().split('\n'):
            if l.strip(): self.q.append(I(l, tok, waits))
    def act(self, fn): self.q.append(fn)
    def delay(self, n): self.q.append(['delay', n])
    def __len__(self): return len(self.q)
    def cost(self): return sum(x.cost for x in self.q if isinstance(x, I))
    def run(self, prog, budget):
        while self.q and budget > 0:
            x = self.q[0]
            if isinstance(x, list):
                if x[1] > 0:
                    x[1] -= 1; return
                self.q.popleft(); continue
            if callable(x):
                self.q.popleft(); x(prog); continue
            if x.kind == 'mfma':
                if not prog.ready(x): return
                self.q.popleft(); prog.emit(x); budget = getattr(self, 'gap', 4); continue
            if x.cost > budget and budget < 2 and x.cost == 2: return
            if not prog.ready(x): return
            self.q.popleft(); prog.emit(x); budget -= x.cost
    def drain(self, prog):
        while self.q:
            x = self.q.popleft()
            if isinstance(x, list): continue
            if callable(x): x(prog)
            else: prog.emit(x)
```

```python
import sys
from asmdsl import *

NAME = "parallel_sum__linear_kernel_hedgehog__glu_gated_swiglu__prompt"
B1F  = 0x000000; B1J = 245760
CSP  = 0x420000
STA  = 0x480000
B2F  = 0x500000; B2K = 8192; B2C = 68 * B2K
AF   = 0xA00000
KVP  = 0x1300000
FLG  = 0x1400000
STAMP = 0x1C00000
WS_N = 0x2000000
BIG  = 0x40000000
AFRT = 68 * 1024
KVS  = 3456
KVFMT = "bf16"
LOG2E = 0x3fb8aa3b; NLOG2E = 0xbfb8aa3b
F_S0, F_S0B, F_H1 = [k * 8192 for k in range(3)]
EPOCH = FLG + 0x10000
L_WP = 0
L_Z = 2048
L_CS = 3072
L_KVF = 4608
L_DUM = 8192
L_EX = 9216
RING = 12288; R = 5
XS = RING + R * 16384
PHI = XS
STG = XS + 32768
L_SQ = STG; L_S1 = L_SQ + 10240; L_S3 = L_S1 + 10240
L_B2 = STG
LDS_N = STG + 32768

def srd(p, d, base, nbytes):
    p.emit(f"s_mov_b32 s{d}, s{base}\ns_and_b32 s{d+1}, s{base+1}, 0xffff\ns_mov_b32 s{d+2}, {nbytes}\ns_mov_b32 s{d+3}, 0x20000")
def kd(name, vgpr, accum):
    return f""".amdhsa_kernel {name}
  .amdhsa_next_free_vgpr {vgpr}
  .amdhsa_next_free_sgpr 102
  .amdhsa_accum_offset {accum}
  .amdhsa_group_segment_fixed_size 0
  .amdhsa_kernarg_size 88
  .amdhsa_user_sgpr_count 2
  .amdhsa_user_sgpr_kernarg_segment_ptr 1
  .amdhsa_system_sgpr_workgroup_id_x 1
  .amdhsa_float_denorm_mode_32 3
.end_amdhsa_kernel
"""
class Stamps:
    def __init__(self, p, on, vreg=41, sreg=84): self.p = p; self.on = on; self.n = 0; self.v = vreg; self.s = sreg; self.names = []
    def __call__(self, name):
        if not self.on or self.n >= 62: return
        r = self.s + 2*(self.n & 1)
        if self.n >= 2: self.p.emit(f"v_writelane_b32 v{self.v}, s{r}, {self.n-2}")
        self.n += 1; self.names.append(name)
        self.p.emit(f"s_memrealtime s[{r}:{r+1}]" if self.on != 2 else f"s_memtime s[{r}:{r+1}]")
    def flush(self, srd, vt):
        if not self.on: return
        p = self.p
        p.emit("s_waitcnt lgkmcnt(0)")
        for k in (self.n - 2, self.n - 1): p.emit(f"v_writelane_b32 v{self.v}, s{self.s + 2*(k & 1)}, {k}")
        p.emit(f"s_lshl_b32 s3, s2, 10\ns_add_u32 s3, s3, {STAMP}\nv_lshlrev_b32 v{vt}, 2, v0\nbuffer_store_dword v{self.v}, v{vt}, s[{srd}:{srd+3}], s3 offen")
        open("stamp_names.txt", "w").write(repr(self.names))

sX, sW, sWS, sQ, s1, s3_, sWP, sB2 = 24, 28, 32, 36, 40, 44, 48, 52
G, J, RH, C, W = 60, 61, 62, 63, 64
TAG, EXP = 22, 23

def table_groups():
    def nh(l): return l & 31, l >> 5
    def g_t1a(w, l):
        n, hh = nh(l)
        afh = (n >> 4)*AFRT + (n & 15)*16 + hh*512
        f = ((n & 3) << 2) | ((n >> 2) & 3)
        w0 = PHI + (32*w + n)*256 + (((4*hh) ^ f) << 4)
        ft = w & 1
        kp = (hh*336 + n*16) if (n < 21 and ft == 0) else BIG
        kp2 = (n*16 + 8*hh) if (n < 21 and ft == 1) else BIG
        return [afh, w0, kp, kp2]
    def g_t1b(w, l):
        head, ft = w >> 1, w & 1
        gq = l >> 4; hk = gq >> 1; r = (l >> 2) & 3; cc = l & 3
        iq = 4*(gq & 1) + cc
        if ft == 0:
            pq = (iq & 4) | ((iq & 1) << 1) | ((iq >> 1) & 1); qa, ha = 4*head + (pq >> 1), pq & 1
        else: qa, ha = 8 + 4*head + (iq >> 1), iq & 1
        qb, hb = 8 + 4*head + (((iq >> 1) + 1) & 3), iq & 1
        out = []
        for q, h in ((qa, ha), (qb, hb)):
            for rd in range(2):
                tok = 8*hk + 4*rd + r; f = (r << 2) | (2*hk + rd)
                out.append(PHI + tok*256 + ((q ^ f) << 4) + 8*h)
        return out
    def g_t1c(w, l):
        n, hh = nh(l)
        return [(l & 15)*4 if w == 0 else BIG, 0 if (w == 0 and l == 0) else BIG, n*4, n*4 if w == 0 else BIG]
    def g_c1a(w, l):
        t = 64*w + l
        return [(l & 31)*16, t*8 if t < 160 else BIG, (L_CS + t*8) if t < 160 else L_DUM, ((l >> 4)*1280 + (l & 15)*16) if (l & 15) < 10 else BIG]
    def g_c1b(w, l):
        half = l >> 5; grp = (l >> 4) & 1; r = (l >> 2) & 3; cc = l & 3
        t0 = 32*grp + 8*cc + 256*r
        if w < 2:
            vq = min(8*w + 4*half + 2*grp + (cc >> 1), 14)
            ad = L_SQ + (vq // 5)*80 + (vq % 5)*8 + 40*(cc & 1) + 256*r
        elif w == 2: ad = (L_S3 if half else L_S1) + 128 + t0
        else: ad = L_S1 + 64*half + t0
        dst = (l & 31)*16 + [half*1024, (122880 if half else 2048), 163840 + half*1024, 0][w]
        stride = [3072, (1024 if half else 3072), 2048, 0][w]
        return [ad, dst, stride, l*4 + (512 + 256*w if w < 3 else 0)]
    def g_c1c(w, l):
        g4 = l >> 4; r = (l >> 2) & 3; cc = l & 3
        a = L_B2 + (w >> 1)*8192 + (8*g4 + r)*256 + 40*cc + 16*(w & 1)
        d = (w >> 1)*B2K + (w & 1)*2048 + l*16
        tile = 4*w + g4
        ea = L_EX + r*256 + 40*cc + 8*min(tile, 4)
        ed = (tile*1024 + (l & 15)*16) if tile < 5 else BIG
        return [a, d, ea, ed]
    def g_t2a(w, l):
        n, hh = nh(l); t = 64*w + l
        if t < 210:
            blk, d = t // 21, t % 21; head, s = blk // 5, blk % 5
            g0 = L_KVF + head*1680 + d*80 + s*16
        else: g0 = L_DUM
        ho = (n >> 2) & 1; r = 4*(n >> 3) + (n & 3)
        kf0 = (L_KVF + hh*1680 + r*80) if ho == hh else L_Z
        kf1 = (L_KVF + hh*1680 + (16 + r)*80) if (ho == hh and r < 5) else L_Z
        return [g0, t*16 if t < 210 else BIG, kf0, kf1]
    def g_t2b(w, l):
        n, hh = nh(l); base = (n >> 4)*AFRT + (n & 15)*16
        return [base + 768*hh, base + 8*hh, (l & 15)*1280 + (l >> 4)*40, l*16 + 4096]
    def g_t2c(w, l):
        out = []
        gq = l >> 4; hi = gq >> 1; r = (l >> 2) & 3; cc = l & 3
        for tp in range(2):
            o = 16*tp + 4*(2*(gq & 1) + (cc >> 1))
            out.append((L_WP + hi*800 + r*40 + o*2) if ((cc & 1) == hi and o < 20) else L_Z)
        return [l*16 + AFRT, l*16 + 2*AFRT, l*16 + 3*AFRT, 0][:0] + out + [0, 0]
    def g_t2d(w, l): return [l*16 + AFRT, l*16 + 2*AFRT, l*16 + 3*AFRT, 0]
    return [("c1b", True, g_c1b), ("t1a", True, g_t1a), ("t1c", True, g_t1c), ("c1a", True, g_c1a), ("c1c", True, g_c1c), ("t1b", True, g_t1b),
            ("t2a", True, g_t2a), ("t2b", False, g_t2b), ("t2c", False, g_t2c), ("t2d", False, g_t2d)]
def table():
    off = {}; data = []
    for name, pw, fn in table_groups():
        off[name] = (len(data)*4, pw)
        for w in range(4 if pw else 1):
            for l in range(64): data += fn(w, l)
    return off, data

def red32(p, v, t):
    for k in (8, 4, 2, 1): p.emit(f"v_add_f32_dpp v{v}, v{v}, v{v} row_ror:{k} row_mask:0xf bank_mask:0xf")
    p.emit(f"v_mov_b32 v{t}, v{v}\nv_permlane16_swap_b32 v{v}, v{t}\nv_add_f32 v{v}, v{v}, v{t}")

def softmax_fill(F, P, T, isq, OUT, keep, tmp, vCP, vCE):
    mx, mn, a, b, s1_, s2_ = [tmp + i for i in range(6)]
    F.add(f"v_max3_f32 v{mx}, v{P}, v{P+1}, v{P+2}\nv_min3_f32 v{mn}, v{P}, v{P+1}, v{P+2}")
    for k in range(3, 19, 2):
        F.add(f"v_max3_f32 v{mx}, v{mx}, v{P+k}, v{P+k+1}\nv_min3_f32 v{mn}, v{mn}, v{P+k}, v{P+k+1}")
    F.add(f"v_max_f32 v{mx}, v{mx}, v{P+19}\nv_min_f32 v{mn}, v{mn}, v{P+19}")
    F.add(f"v_mul_f32 v{a}, v{vCE}, v{mx}\nv_mul_f32 v{b}, v{vCP}, v{mn}")
    F.add(f"v_fma_f32 v{T}, v{P}, v{vCP}, v{a}\nv_fma_f32 v{P}, v{P}, v{vCE}, v{b}")
    for i in range(20):
        F.add(f"v_exp_f32 v{T+i}, v{T+i}")
        if i < 19: F.add(f"v_fma_f32 v{T+i+1}, v{P+i+1}, v{vCP}, v{a}")
        F.add(f"v_exp_f32 v{P+i}, v{P+i}")
        if i < 19: F.add(f"v_fma_f32 v{P+i+1}, v{P+i+1}, v{vCE}, v{b}")
        if i == 2: F.add(f"v_add_f32 v{s1_}, v{T}, v{T+1}\nv_add_f32 v{s2_}, v{P}, v{P+1}")
        elif i > 2: F.add(f"v_add_f32 v{s1_}, v{s1_}, v{T+i-1}\nv_add_f32 v{s2_}, v{s2_}, v{P+i-1}")
    F.add(f"v_add_f32 v{s1_}, v{s1_}, v{T+19}\nv_add_f32 v{s2_}, v{s2_}, v{P+19}")
    if isq:
        F.add(f"v_rcp_f32 v{s2_}, v{s2_}\nv_mul_f32 v{keep}, 0x358637bd, v{s1_}\nv_mul_f32 v{s2_}, v{s2_}, v{s1_}")
        for i in range(10):
            F.add(f"v_cvt_pk_bf16_f32 v{OUT+i}, v{T+2*i}, v{T+2*i+1}")
            F.add(f"v_mul_f32 v{P+2*i}, v{P+2*i}, v{s2_}\nv_mul_f32 v{P+2*i+1}, v{P+2*i+1}, v{s2_}")
        for i in range(10): F.add(f"v_cvt_pk_bf16_f32 v{OUT+10+i}, v{P+2*i}, v{P+2*i+1}")
    else:
        F.add(f"v_rcp_f32 v{s1_}, v{s1_}\nv_rcp_f32 v{s2_}, v{s2_}")
        for i in range(10):
            F.add(f"v_mul_f32 v{T+2*i}, v{T+2*i}, v{s1_}\nv_mul_f32 v{T+2*i+1}, v{T+2*i+1}, v{s1_}")
            F.add(f"v_mul_f32 v{P+2*i}, v{P+2*i}, v{s2_}\nv_mul_f32 v{P+2*i+1}, v{P+2*i+1}, v{s2_}")
            F.add(f"v_cvt_pk_bf16_f32 v{OUT+i}, v{T+2*i}, v{T+2*i+1}\nv_cvt_pk_bf16_f32 v{OUT+10+i}, v{P+2*i}, v{P+2*i+1}")

def silu_fill(F, Gt, U, tmp, OUT, vCE, vS2):
    for i in range(0, 16, 2):
        t0, t1 = tmp + (i & 2), tmp + (i & 2) + 1
        F.add(f"v_mul_f32 v{t0}, v{vCE}, v{Gt+i}\nv_mul_f32 v{t1}, v{vCE}, v{Gt+i+1}")
        F.add(f"v_exp_f32 v{t0}, v{t0}\nv_mul_f32 v{Gt+i}, v{Gt+i}, v{U+i}\nv_exp_f32 v{t1}, v{t1}\nv_mul_f32 v{Gt+i+1}, v{Gt+i+1}, v{U+i+1}")
        F.add(f"v_fma_f32 v{t0}, v{t0}, v{vS2}, v{vS2}\nv_fma_f32 v{t1}, v{t1}, v{vS2}, v{vS2}")
        F.add(f"v_rcp_f32 v{t0}, v{t0}\nv_rcp_f32 v{t1}, v{t1}")
        if i >= 2: F.add(f"v_cvt_pk_bf16_f32 v{OUT+i//2-1}, v{Gt+i-2}, v{Gt+i-1}")
        F.add(f"v_mul_f32 v{Gt+i}, v{Gt+i}, v{t0}\nv_mul_f32 v{Gt+i+1}, v{Gt+i+1}, v{t1}")
    F.add(f"v_cvt_pk_bf16_f32 v{OUT+7}, v{Gt+14}, v{Gt+15}")

class FSink:
    def __init__(self, F): self.F = F
    def emit(self, text, tok=None, waits=None): self.F.add(text, tok, waits)

def gen_main(opt):
    p = Prog(); name = NAME + "_kernel"
    p.raw(f".globl {name}"); p.raw(".p2align 8"); p.raw(f".type {name},@function"); p.raw(f"{name}:")
    O = lambda k, d: opt.get(k, d)
    PD = O("pd", 4); NB = O("nb", 6); WG = O("wgrp", 2)
    log = (lambda *a: print(*a, file=sys.stderr)) if O("v", 1) else (lambda *a: None)
    toff, tdata = table()
    vLANE = 1; vTAG = 1; vL16, vL16b = 2, 3
    vXD, vWD, vXR = 4, 8, 12
    vTR0, vTR1, vTR0b, vTR1b = 16, 17, 18, 19
    vG0, vGS0, vKF0, vKF1 = 4, 5, 6, 7
    vAFo, vAFo2, vOUT, vB4 = 8, 9, 10, 11
    vA1, vA2, vA3 = 12, 13, 14
    vWP0, vWP1, vPL, vCHK = 16, 17, 18, 19
    vAFh, vW0, vKP, vKP2 = 20, 21, 22, 23
    vKA0, vKA1, vKB0, vKB1 = 24, 25, 26, 27
    vFP, vFS, vCSR, vFP32 = 28, 29, 30, 31
    MF = 32; vRS, vS2, vCP, vCE, VS1 = 36, 37, 38, 39, 40
    CF = 42; AC1 = 48; AC2 = 112; PP = 176; TT = 208; TM = 228; PHQ = 236; ACC = 80; SP = 160
    C1A, C1B, C1C = PHQ, PHQ + 4, PHQ + 8
    XA = 0; BA = 256 - 4*NB
    ST = Stamps(p, O("stamp", 0))
    WSR = f"s[{sWS}:{sWS+3}]"
    p.emit("s_cmp_ge_u32 s2, 256\ns_cbranch_scc1 M_end")
    p.emit("s_load_dwordx8 s[4:11], s[0:1], 0\ns_load_dwordx4 s[12:15], s[0:1], 40\ns_load_dwordx4 s[16:19], s[0:1], 56\ns_load_dwordx2 s[20:21], s[0:1], 80")
    ST("start")
    p.emit(f"""v_lshrrev_b32 v{vLANE}, 6, v0
s_and_b32 s56, s2, 7
s_lshr_b32 s57, s2, 3
v_readfirstlane_b32 s{W}, v{vLANE}
s_getpc_b64 s[98:99]""")
    p.raw("M_pc:")
    if O("cpf", 1):
        NL = O("cpl", 10)
        p.emit(f"""s_mul_i32 s82, s57, {NL}
v_min_u32 v{TM}, {NL-1}, v0
v_add_u32 v{TM}, s82, v{TM}
v_lshlrev_b32 v{TM}, 7, v{TM}
v_min_u32 v{TM}, M_codeend-M_pc-4, v{TM}
global_load_dword a{BA-1}, v{TM}, s[98:99]""")
    p.emit(f"""s_and_b32 s58, s56, 1
s_lshr_b32 s59, s56, 1
s_lshr_b32 s65, s57, 2
s_and_b32 s66, s57, 3
s_lshl3_add_u32 s{G}, s58, s65
s_lshl2_add_u32 s{J}, s59, s66
s_lshl3_add_u32 s{RH}, s59, s65
s_lshl2_add_u32 s{C}, s58, s66
v_and_b32 v{vLANE}, 63, v0""")
    p.emit(f"s_mul_i32 s66, s66, 5\ns_add_u32 s66, s66, 1\ns_lshr_b32 s66, s66, 1\ns_add_u32 s70, s65, s66\ns_cmp_ge_u32 s70, 10\ns_cselect_b32 s56, 10, 0\ns_sub_u32 s70, s70, s56" if O("rot", 1) else "s_mov_b32 s70, 0")
    def sk(m): return f"s_add_u32 s{70+m}, s{69+m}, 1\ns_cmp_eq_u32 s{70+m}, 10\ns_cselect_b32 s{70+m}, 0, s{70+m}"
    p.emit(f"""v_lshlrev_b32 v{vL16}, 4, v{vLANE}
v_lshrrev_b32 v{TM+4}, 3, v{vLANE}
v_and_b32 v{TM+5}, 7, v{vLANE}
v_lshrrev_b32 v{TM+2}, 4, v{vLANE}
v_xor_b32 v{TM+3}, v{TM+5}, v{TM+2}
v_mul_u32_u24 v{vXD}, 1280, v{TM+4}
v_lshl_add_u32 v{vXD}, v{TM+3}, 4, v{vXD}
v_xor_b32 v{vXD+1}, 64, v{vXD}
v_add_u32 v{vXD+2}, {2*9216}, v{vXD}
v_add_u32 v{vXD+3}, {3*9216}, v{vXD+1}
v_add_u32 v{vXD+1}, 9216, v{vXD+1}
v_and_b32 v{TM+2}, 1, v{TM+2}
v_lshlrev_b32 v{TM+2}, 2, v{TM+2}
v_xor_b32 v{TM+5}, v{TM+5}, v{TM+2}
v_mul_u32_u24 v{vWD}, 3072, v{TM+4}
v_lshl_add_u32 v{vWD}, v{TM+5}, 4, v{vWD}
v_add_u32 v{vWD+1}, 23552, v{vWD}
v_add_u32 v{vWD+2}, {2*23552}, v{vWD}
v_add_u32 v{vWD+3}, {3*23552}, v{vWD}
s_lshl2_add_u32 s80, s{G}, s{W}
s_mul_i32 s81, s80, 40960
s_lshr_b32 s82, s{W}, 1
s_mul_i32 s83, s82, 32*3072
s_lshl_b32 s57, s{J}, 7
s_add_u32 s83, s83, s57
s_and_b32 s57, s{W}, 1
s_lshl1_add_u32 s82, s57, s82
s_lshl_b32 s82, s82, 12
s_lshl_b32 s3, s{W}, 13
s_mov_b32 s{sW+2}, 640*3072
s_mov_b32 s{sW+3}, 0x20000
s_mov_b32 s{sX+2}, 2048*1280
s_mov_b32 s{sX+3}, 0x20000
s_bitcmp1_b32 s{W}, 0
s_cselect_b32 s{sW}, s14, s12
s_cselect_b32 s{sW+1}, s15, s13
s_and_b32 s{sW+1}, s{sW+1}, 0xffff
s_mov_b32 s{sX}, s4
s_and_b32 s{sX+1}, s5, 0xffff""")
    LDP = O("ldpol", "")
    def xdma(m):
        return [(f"s_lshl_b32 s4, s{70+m}, 7\n" if e == 0 else "") + f"s_add_u32 m0, s3, {XS + (m % 2)*4096}\n" + ("s_add_u32 s4, s4, s81\n" if e == 0 else "") +
                f"buffer_load_dwordx4 v{vXD+e}, s[{sX}:{sX+3}], s4 offen offset:{1024*e}{LDP} lds" for e in range(4)]
    stages = [('c1', m) for m in range(10)] + [('c2', m) for m in range(10)] + [('t3', m) for m in range(3)] + [('g2', m) for m in range(5)]
    NS = len(stages)
    def bdma(t):
        kind, m = stages[t]; slot = RING + (t % R)*16384
        n = 4; mr = 38
        if kind == 'c1': su = f"s_mul_i32 s5, s{70+m}, 64*3072\n"; ad = 83; mr = 82
        elif kind == 'c2': su = f"s_mul_i32 s5, s{70+m}, 12288\n"; ad = 36; n = 3; mr = 37
        elif kind == 't3': su = f"s_add_u32 s5, s{70+4*m}, s{W}\ns_cmp_ge_u32 s5, 10\ns_cselect_b32 s12, 10, 0\ns_sub_u32 s5, s5, s12\ns_lshl_b32 s5, s5, 12\n"; ad = 39
        if kind == 't3' and m == 2:
            su = f"s_bitcmp1_b32 s{W}, 1\ns_cselect_b32 s5, s79, s78\ns_lshl_b32 s5, s5, 1\ns_and_b32 s12, s{W}, 1\ns_add_u32 s5, s5, s12\ns_lshl_b32 s5, s5, 11\ns_lshr_b32 s13, s38, 1\n"; n = 2; mr = 13
        if kind == 'g2': su = f"s_bitcmp1_b32 s{W}, 1\ns_cselect_b32 s5, s{70+2*m+1}, s{70+2*m}\ns_lshl_b32 s5, s5, 13\n"; ad = 40
        L = []
        for e in range(n):
            pre = (su + f"s_add_u32 m0, s{mr}, {slot}\ns_add_u32 s5, s5, s{ad}\n") if e == 0 else f"s_add_u32 m0, s{mr}, {slot}\n"
            L.append(pre + (f"buffer_load_dwordx4 v{vWD+e}, s[{sW}:{sW+3}], s5 offen offset:{1024*e}{LDP} lds" if kind == 'c1' else
                            f"buffer_load_dwordx4 v{vL16}, {WSR}, s5 offen offset:{1024*e} sc1 lds"))
        return L
    def emit_one(x, tok):
        ls = x.split("\n")
        for l in ls[:-1]: p.emit(l)
        p.emit(ls[-1], tok=tok)
    def emit_dma(L, tok):
        for x in L: emit_one(x, tok)
    emit_dma(xdma(0), "X0"); emit_dma(bdma(0), "D0")
    ST("iss0")
    srd(p, sQ, 6, 640*3840); srd(p, s1, 12, 640*3072); srd(p, s3_, 14, 640*3072)
    a, b, c_, d, e_, f = range(PP, PP + 6)
    p.emit(f"""v_lshrrev_b32 v{a}, 4, v{vLANE}
v_and_b32 v{b}, 15, v{vLANE}
v_mul_u32_u24 v{c_}, 52, v{b}
v_lshrrev_b32 v{c_}, 8, v{c_}
v_mul_u32_u24 v{d}, 1200, v{c_}
v_lshl_add_u32 v{d}, v{b}, 4, v{d}
v_add_u32 v{d}, 1280, v{d}
v_subrev_u32 v{e_}, 3840, v{d}
v_cmp_lt_u32 vcc, 9, v{b}
v_mov_b32 v{f}, {BIG}
v_cndmask_b32 v{d}, v{d}, v{e_}, vcc
v_mul_u32_u24 v{e_}, 3840, v{a}
v_cmp_gt_u32 vcc, 15, v{b}
v_add_u32 v{d}, v{d}, v{e_}
s_lshl_b32 s56, s{J}, 6
v_cndmask_b32 v{d}, v{f}, v{d}, vcc
s_sub_u32 s57, 1920, s56
v_lshlrev_b32 v{e_}, 4, v{b}
v_cmp_lt_u32 vcc, 7, v{b}
v_add_u32 v{c_}, s57, v{e_}
s_mul_i32 s57, s{G}, 40
v_cndmask_b32 v{e_}, v{e_}, v{c_}, vcc
v_mul_u32_u24 v{c_}, 3072, v{a}
v_cmp_gt_u32 vcc, 12, v{b}
v_add_u32 v{e_}, v{e_}, v{c_}
s_lshl2_add_u32 s57, s{W}, s57
v_cndmask_b32 v{e_}, v{f}, v{e_}, vcc
s_mul_i32 s58, s57, 3840
s_mul_i32 s59, s{J}, 80
s_add_u32 s58, s58, s59
s_mul_i32 s57, s57, 3072
s_lshl1_add_u32 s57, s56, s57
s_lshl_b32 s59, s{W}, 10""")
    def srcdma(i):
        if i == 2: p.emit(f"s_cmp_lt_u32 s{W}, 2\ns_cselect_b64 s[66:67], -1, 0\nv_cndmask_b32 v{d}, v{f}, v{d}, s[66:67]\nv_cndmask_b32 v{e_}, v{f}, v{e_}, s[66:67]")
        for (reg, sr, so, lb) in ((d, sQ, 58, L_SQ), (e_, s1, 57, L_S1), (e_, s3_, 57, L_S3)):
            if i < 2: p.emit(f"s_add_u32 m0, s59, {lb + i*4096}")
            else: p.emit(f"s_add_u32 s65, s59, {lb + i*4096}\ns_cmp_lt_u32 s{W}, 2\ns_cselect_b32 m0, s65, {L_DUM}")
            p.emit(f"buffer_load_dwordx4 v{reg}, s[{sr}:{sr+3}], s{so} offen{LDP} lds", tok="SRC")
        if i < 2: p.emit("s_add_u32 s58, s58, 16*3840\ns_add_u32 s57, s57, 16*3072")
    p.emit(sk(1))
    if O("srcfirst", 1):
        for i in range(3): srcdma(i)
    p.emit(f"""v_add_u32 v{vL16b}, 0x10000, v{vL16}
v_and_b32 v{TM}, 31, v{vLANE}
v_lshrrev_b32 v{TM+1}, 5, v{vLANE}
v_bfe_u32 v{TM+2}, v{vLANE}, 1, 3
v_xor_b32 v{TM+2}, v{TM+2}, v{TM+1}
v_lshlrev_b32 v{TM+2}, 4, v{TM+2}
v_lshl_add_u32 v{TM+2}, v{TM}, 7, v{TM+2}
s_add_u32 s56, s3, {XS}
v_add_u32 v{vXR}, s56, v{TM+2}
v_xor_b32 v{vXR+1}, 32, v{vXR}
v_xor_b32 v{vXR+2}, 64, v{vXR}
v_xor_b32 v{vXR+3}, 96, v{vXR}
v_mul_u32_u24 v{TM+4}, 1280, v{TM+1}
v_lshl_add_u32 v{TM+5}, v{TM}, 4, v{TM+4}
v_lshl_add_u32 v{TM+4}, v{TM}, 3, v{TM+4}
v_bfe_u32 v{TM}, v{vLANE}, 2, 2
v_lshl_add_u32 v{TM+1}, v{TM+1}, 3, v{TM}
v_lshlrev_b32 v{TM+1}, 7, v{TM+1}
v_lshrrev_b32 v{TM}, 1, v{TM}
v_lshlrev_b32 v{TM}, 6, v{TM}
v_bfe_u32 v{TM+2}, v{vLANE}, 4, 1
v_lshl_add_u32 v{TM}, v{TM+2}, 5, v{TM}
v_and_b32 v{TM+2}, 3, v{vLANE}
v_lshl_add_u32 v{TM}, v{TM+2}, 3, v{TM}
v_add_u32 v{vTR0}, v{TM}, v{TM+1}
v_xor_b32 v{vTR1}, 64, v{vTR0}
v_add_u32 v{vTR0b}, 0x10000, v{vTR0}
v_add_u32 v{vTR1b}, 0x10000, v{vTR1}""")
    srd(p, sWS, 20, WS_N)
    p.emit(f"s_add_u32 s56, s20, {EPOCH}\ns_addc_u32 s57, s21, 0\ns_load_dword s{TAG}, s[56:57], 0" if O("srcfirst", 1) else f"s_add_u32 s68, s20, {EPOCH}\ns_addc_u32 s69, s21, 0\ns_load_dword s{TAG}, s[68:69], 0")
    emit_dma(xdma(1), "X1"); emit_dma(bdma(1), "D1")
    if not O("srcfirst", 1):
        for i in range(3): srcdma(i)
    SV = PP + 8
    p.emit(f"""s_lshl4_add_u32 s88, s{G}, s{J}
s_lshl2_add_u32 s89, s88, s{W}
s_mul_i32 s56, s89, 2560
buffer_load_dwordx4 v[{SV}:{SV+3}], v{TM+5}, s[{sX}:{sX+3}], s56 offen
buffer_load_dwordx4 v[{SV+4}:{SV+7}], v{TM+5}, s[{sX}:{sX+3}], s56 offen offset:512
buffer_load_dwordx2 v[{SV+8}:{SV+9}], v{TM+4}, s[{sX}:{sX+3}], s56 offen offset:1024
s_add_u32 s98, s98, M_tbl-M_pc
s_addc_u32 s99, s99, 0
v_lshlrev_b32 v{TM+7}, 4, v0""")
    vT16 = TM + 7
    def tload(nm, reg):
        off, pw = toff[nm]
        return f"s_add_u32 s100, s98, {off}\ns_addc_u32 s101, s99, 0\nglobal_load_dwordx4 v[{reg}:{reg+3}], v{vT16 if pw else vL16}, s[100:101]"
    for m in range(2, 10): p.emit(sk(m))
    ST("iss1")
    seq = []
    for t, (kind, m) in enumerate(stages):
        slot = RING + (t % R)*16384
        if kind == 'c1':
            for e in range(4):
                for (mt, tt) in ((0,0),(1,0),(0,1),(1,1)): seq.append(dict(t=t, tr=(tt, slot + mt*8192 + e*2048), acc=AC1 + 32*mt + 16*tt, s=4*m + e))
        elif kind == 'c2':
            for e in range(4):
                for tl in range(3): seq.append(dict(t=t, off=slot + e*3072 + tl*1024, acc=AC2 + 16*tl, s=4*m + e))
        elif kind == 't3':
            for e in range(16 if m < 2 else 8): seq.append(dict(t=t, off=slot + e*1024, acc=AC2 + 48, s=16*m + e))
        elif kind == 'g2':
            for e in range(8):
                for mt in range(2): seq.append(dict(t=t, off=slot + e*2048 + mt*1024, acc=AC1 + 16*mt, s=8*m + e))
    NM = len(seq)
    for i, x in enumerate(seq): x['sf'] = (i == 0 or seq[i-1]['t'] != x['t']); x['first'] = (x['s'] == 0)
    pos_c1 = 160; pos_kv = 280; pos_q = 320
    st = {'bars': 0, 'pos': 0, 'now': 0.0, 'k': 0, 'mfree': 0}
    ta = {'free': 0.0}
    TA = O("ta", 66)
    def tick():
        for i in p.out[st['k']:]:
            c = {'valu': 4.3, 'trans': 8.3, 'salu': 4, 'dsr': 4.3, 'dsw': 6, 'vld': 10, 'vst': 10, 'dma': 10, 'wait': 4, 'barrier': 12, 'nop': 4, 'ctl': 6, 'smem': 4}.get(i.kind, 0)
            if i.kind == 'mfma':
                start = max(st['now'], st['mfree']); st['mfree'] = start + (32 if i.mf == 8 else 16); st['now'] = start + 8
            else:
                if i.kind in ('vld', 'vst', 'dma'):
                    wgt = TA if 'x4' in i.op else TA/2
                    st['now'] = max(st['now'], ta['free'] - O("taqmax", 330)); ta['free'] = max(ta['free'], st['now']) + wgt
                st['now'] += c
        st['k'] = len(p.out)
        return st['now']
    def bread(i):
        x = seq[i]; b = BA + 4*(i % NB)
        if 'tr' in x:
            tt, off = x['tr']; hi = off + 512 >= 65536
            v = (vTR1b if tt else vTR0b) if hi else (vTR1 if tt else vTR0)
            o = off - (65536 if hi else 0)
            p.emit(f"ds_read_b64_tr_b16 a[{b}:{b+1}], v{v} offset:{o}\nds_read_b64_tr_b16 a[{b+2}:{b+3}], v{v} offset:{o+512}")
        else:
            off = x['off']; p.emit(f"ds_read_b128 a[{b}:{b+3}], v{vL16 if off < 65536 else vL16b} offset:{off & 0xffff}")
    vq = deque(); gates = {}
    pool = deque([f"a{160+4*k}" for k in range((BA - 160)//4)]); vpool = deque()
    def xread(m, e):
        assert not any(x[1] == f"X{m}" for x in vq), f"x {m} DMA not issued"
        if e == 0: p.wait_tok(f"X{m}")
        s = 4*m + e
        p.emit(f"ds_read_b128 a[{XA+4*s}:{XA+4*s+3}], v{vXR+e} offset:{(m % 2)*4096}")
    def push(L, tok):
        for x in L: vq.append((x, tok))
    events = []; slow = []; timed = []
    def event(delay, toks=(), pre=None, post=None, name="", urgent=False):
        events.append(dict(t=tick() + delay, toks=list(toks), pre=pre, post=post, name=name, urgent=urgent))
    def run_timed():
        for x in list(timed):
            if x[0] <= tick(): timed.remove(x); x[1](p)
    def due(): return [e for e in events if e['t'] <= tick()]
    def flush_vq(tok):
        while any(x[1] == tok for x in vq): vq_issue(True)
    def bar(t, force_all=False):
        if isinstance(t, int): flush_vq(f"D{t}")
        ev = list(events) if force_all else due()
        p.wait_tok(*([f"D{t}"] + [k for e in ev for k in e['toks']]))
        for e in ev:
            if e['pre']: e['pre']()
        p.emit("s_barrier"); st['bars'] += 1
        for e in ev:
            events.remove(e)
            if e['post']: e['post']()
            log(f"  event {e['name']} at pos {st['pos']} t={tick():.0f}"); ST("ev_" + e['name'])
        if not isinstance(t, int): return
        if t + 2 < 10: vq.append(('xw', t)); push(xdma(t + 2), f"X{t+2}")
        for u in ([2, 3] if t == 0 else ([4] if t == 1 else [t - 2 + R])):
            if u < NS:
                if u == 10: vq.append(('gate', 'S0'))
                push(bdma(u), f"D{u}")
    def vq_ready():
        while vq and ((vq[0][0] == 'gate' and gates.get(vq[0][1])) or vq[0][0] == 'xw'):
            y = vq.popleft()
            if y[0] == 'xw': p.wait_regs([f"a{XA+16*y[1]+k}" for k in range(16)])
        return bool(vq) and vq[0][0] != 'gate'
    def vq_issue(force=False):
        assert vq_ready(), "vq blocked by gate"
        tx, tok = vq.popleft(); emit_one(tx, tok)
    def flag_post(expr, then):
        def f():
            p.emit(f"{expr}\nbuffer_store_dword v{vTAG}, v{vFS}, {WSR}, s14 offen sc1")
            if then: timed.append((tick() + then[0], then[1]))
        return f
    def publish(name, tok, expr, delay, then=None, urgent=False):
        F.act(lambda prog: event(delay, [tok], None, flag_post(expr, then), "pub_" + name, urgent))
    def check(name, reload_txt, cmp_txt):
        p.emit(f"{cmp_txt}\ns_cmp_lg_u64 s[100:101], 0\ns_cbranch_scc1 M_slow_{name}"); p.raw(f"M_back_{name}:")
        slow.append((name, reload_txt, cmp_txt))
    def poll(name, expr, delay, gate, reg, voff, sreg, urgent=False):
        ld = f"buffer_load_dword v{reg}, v{voff}, {WSR}, s{sreg} offen sc1"
        def go(prog):
            prog.emit(expr); prog.emit(ld)
            event(delay, [], lambda: check(name, ld, f"v_cmp_ne_u32 s[100:101], s{EXP}, v{reg}"), lambda: gates.__setitem__(gate, True), "poll_" + name, urgent)
        return go
    F = Filler(); FS = FSink(F)
    def gate_pos(k): F.q.append(['gate', lambda: st['pos'] >= k])
    def gate_on(g): F.q.append(['gate', lambda: gates.get(g, False)])
    def gate_time(d):
        box = {}
        F.act(lambda prog: box.__setitem__('t', tick() + d)); F.q.append(['gate', lambda: tick() >= box['t'], 'time'])
    def setg(g, delay=0):
        F.act(lambda prog: gates.__setitem__(g, True) if not delay else timed.append((tick() + delay, lambda prog: gates.__setitem__(g, True))))
    def mark(nm): F.act(lambda prog: (log(f"  {nm} at pos {st['pos']} t={tick():.0f}"), ST(nm.replace(" ", "_"))))
    def sync_local(name, toks, delay=0, urgent=False):
        F.act(lambda prog: event(delay, toks, None, lambda: gates.__setitem__(name, True), name, urgent))
    def atomic(text, tok=None): F.act(lambda prog: emit_one(text, tok))
    def glue(x):
        while 'scc' in x.w or 'scc' in x.r:
            n = None
            for k, y in enumerate(list(F.q)[:6]):
                if not isinstance(y, I): break
                if 'scc' in y.r: n = k; break
                if 'scc' in y.w: break
            if n is None: return
            for _ in range(n + 1): x = F.q.popleft(); p.emit(x)
    def step_filler(k0, cap):
        if not F.q: return False
        x = F.q[0]
        if isinstance(x, list):
            if not x[1](): return False
            F.q.popleft(); return True
        if callable(x): F.q.popleft(); x(p); return True
        if not p.ready(x): return False
        if x.kind != 'mfma' and p.cost_since(k0[0]) + x.cost > cap: return False
        F.q.popleft(); p.emit(x); glue(x)
        if x.kind == 'mfma': k0[0] = len(p.out)
        return True
    sync_local("SRC", ["SRC"], O("d_src", 300))
    for nm, reg in (("c1b", C1B), ("t1a", vAFh), ("t1c", vFP), ("c1a", C1A), ("c1c", C1C)): atomic(tload(nm, reg))
    F.add(f"""s_mul_i32 s{TAG}, s{TAG}, 0x41c64e6d
s_add_u32 s{TAG}, s{TAG}, 0x3039
s_cmp_eq_u32 s{W}, 0
s_cselect_b32 s{EXP}, s{TAG}, 0""")
    atomic(f"""s_mov_b32 s{sWP}, s8
s_and_b32 s{sWP+1}, s9, 0xffff
s_mov_b32 s{sWP+2}, 25600
s_mov_b32 s{sWP+3}, 0x20000
s_mul_i32 s56, s{J}, 1600
s_min_u32 s57, s{W}, 1
s_mul_i32 s57, s57, 576
s_add_u32 m0, s57, {L_WP}
s_add_u32 s56, s56, s57
buffer_load_dwordx4 v{vL16}, s[{sWP}:{sWP+3}], s56 offen lds""", "WP")
    U = AC2 + 16; sa, sb, sc_, so = U + 20, U + 21, U + 22, U + 24
    for i in range(10): F.add(f"v_lshlrev_b32 v{U+2*i}, 16, v{SV+i}\nv_and_b32 v{U+2*i+1}, 0xffff0000, v{SV+i}")
    F.add(f"v_add_f32 v{sa}, v{U}, v{U+1}\nv_add_f32 v{sb}, v{U+2}, v{U+3}")
    for i in range(4, 20, 2): F.add(f"v_add_f32 v{sa}, v{sa}, v{U+i}\nv_add_f32 v{sb}, v{sb}, v{U+i+1}")
    F.add(f"v_add_f32 v{sa}, v{sa}, v{sb}")
    red32(FS, sa, sb)
    F.add(f"v_mul_f32 v{sa}, 0x3acccccd, v{sa}")
    for i in range(20): F.add(f"v_sub_f32 v{U+i}, v{U+i}, v{sa}")
    F.add(f"v_mul_f32 v{sb}, v{U}, v{U}\nv_mul_f32 v{sc_}, v{U+1}, v{U+1}")
    for i in range(2, 20, 2): F.add(f"v_fmac_f32 v{sb}, v{U+i}, v{U+i}\nv_fmac_f32 v{sc_}, v{U+i+1}, v{U+i+1}")
    F.add(f"v_add_f32 v{sb}, v{sb}, v{sc_}")
    red32(FS, sb, sc_)
    F.add(f"""v_mul_f32 v{sb}, 0x3acccccd, v{sb}
v_cvt_pk_bf16_f32 v{so}, -v{sa}, -v{sa}
v_cvt_pk_bf16_f32 v{sb}, v{sb}, v{sb}
v_and_b32 v{sc_}, 31, v{vLANE}
v_lshlrev_b32 v{sb}, 16, v{sb}
v_add_f32 v{sb}, 0x3727c5ac, v{sb}
v_cmp_eq_u32 vcc, 0, v{sc_}
v_cvt_pk_bf16_f32 v{sb}, v{sb}, v{sb}
v_lshrrev_b32 v{sa}, 1, v{vLANE}
v_lshlrev_b32 v{sb}, 16, v{sb}
v_sqrt_f32 v{sb}, v{sb}
v_mov_b32 v{sc_}, {BIG}
v_cvt_pk_bf16_f32 v{sb}, v{sb}, v{sb}
v_cndmask_b32 v{sa}, v{sc_}, v{sa}, vcc
v_lshlrev_b32 v{sb}, 16, v{sb}
v_rcp_f32 v{so+1}, v{sb}
v_mov_b32 v{so+3}, s{TAG}
v_mul_f32 v{so+2}, v{sb}, v{sb}
s_lshl_b32 s56, s89, 5
s_add_u32 s56, s56, {STA}
buffer_store_dwordx4 v[{so}:{so+3}], v{sa}, {WSR}, s56 offen sc1
v_mov_b32 v{vTAG}, s{TAG}""")
    SN = TT
    F.add("\n".join(f"v_mov_b32 v{SN+k}, -1" for k in range(4)) + "\n" + "\n".join(f"v_mov_b32 v{SN+4+k}, 0" for k in range(4)))
    F.add(f"ds_write_b128 v{vL16}, v[{SN+4}:{SN+7}] offset:{L_Z}", tok="WP")
    F.add(f"""s_mul_i32 s50, s{J}, {16*KVS}
s_add_u32 s50, s50, {KVP}
s_mul_i32 s51, s{G}, {KVS}
s_add_u32 s51, s51, s50
s_lshr_b32 s56, s{W}, 1
s_mul_i32 s56, s56, 1680
s_add_u32 s51, s51, s56""")
    F.add(f"buffer_store_dwordx4 v[{SN}:{SN+3}], v{vKP}, {WSR}, s51 offen sc1\nbuffer_store_dwordx4 v[{SN}:{SN+3}], v{vKP}, {WSR}, s51 offen offset:672 sc1\nbuffer_store_dwordx2 v[{SN}:{SN+1}], v{vKP2}, {WSR}, s51 offen offset:1344 sc1")
    F.add(f"""s_mov_b32 s65, 0x3f803f80
s_mul_i32 s57, s{G}, 5
s_mul_i32 s58, s{J}, {B1J}
s_mul_i32 s59, s88, 0
s_lshl4_add_u32 s59, s{J}, s{G}
s_mul_i32 s59, s59, 1280
s_add_u32 s59, s59, {CSP}""".replace("s_mul_i32 s59, s88, 0\n", ""))
    mark("stats pub")
    gate_on("SRC")
    def repack(prog):
        D = AC2; a1, a2, a3, a4, tv = AC2 + 40, AC2 + 41, AC2 + 42, AC2 + 43, AC2 + 44
        sn = prog.snapshot()
        def reads(off, base):
            for k in range(5): prog.emit(f"ds_read_b64_tr_b16 v[{base+4*k}:{base+4*k+1}], v{C1B} offset:{off + 2048*k}\nds_read_b64_tr_b16 v[{base+4*k+2}:{base+4*k+3}], v{C1B} offset:{off + 2048*k + 1024}")
        def colsum(x, y, base):
            for k in range(0, 20, 2): prog.emit(f"v_dot2_f32_bf16 v{x}, v{base+k}, s65, {'0' if k == 0 else f'v{x}'}\nv_dot2_f32_bf16 v{y}, v{base+k+1}, s65, {'0' if k == 0 else f'v{y}'}")
        reads(0, D)
        prog.emit(f"s_cmp_eq_u32 s{W}, 3\ns_cbranch_scc1 Mr_w3")
        sn2 = prog.snapshot()
        for k in range(5):
            prog.emit(f"""s_add_u32 s56, s57, {k}
s_lshr_b32 s66, s56, 1
s_and_b32 s56, s56, 1
v_mad_u32_u24 v{tv+(k&1)}, v{C1B+2}, s66, v{C1B+1}
s_lshl_b32 s56, s56, 9
s_add_u32 s56, s56, s58
buffer_store_dwordx4 v[{D+4*k}:{D+4*k+3}], v{tv+(k&1)}, {WSR}, s56 offen sc1""")
        prog.emit("s_branch Mr_j")
        prog.raw("Mr_w3:"); prog.restore(sn2)
        reads(L_S3 - L_S1, D + 20); colsum(a3, a4, D + 20)
        prog.emit(f"v_add_f32 v{a3}, v{a3}, v{a4}\nbuffer_store_dword v{a3}, v{C1B+3}, {WSR}, s59 offen offset:256 sc1")
        prog.raw("Mr_j:"); prog.join(sn, 1, "PUB0")
        colsum(a1, a2, D)
        prog.emit(f"v_add_f32 v{a1}, v{a1}, v{a2}")
        prog.emit(f"buffer_store_dword v{a1}, v{C1B+3}, {WSR}, s59 offen sc1", tok="PUB0")
    F.act(repack)
    mark("repacked")
    F.add(f"""s_lshl_b32 s41, s{J}, 8
s_add_u32 s41, s41, {FLG}
s_lshl2_add_u32 s42, s{G}, s41""")
    publish("s0", "PUB0", f"s_add_u32 s14, s42, {F_S0}", O("d_pub0", 900), (O("d_vis", 1300), poll("s0", f"s_add_u32 s15, s41, {F_S0}", O("d_poll", 500), "S0", TM, vFP, 15)))
    sync_local("STGFREE", [])
    F.add(f"""s_mul_i32 s40, s{J}, {B1J}
s_lshl_b32 s38, s{W}, 12
s_add_u32 s39, s40, 122880
s_mul_i32 s37, s{W}, 3072
s_add_u32 s36, s40, s37
s_and_b32 s56, s{W}, 1
s_lshl_b32 s56, s56, 12
s_add_u32 s40, s40, s56
s_add_u32 s40, s40, 163840
s_lshl_b32 s47, s80, 9
s_add_u32 s47, s47, {STA}
s_mul_i32 s48, s80, {2*AFRT}
s_add_u32 s48, s48, {AF}
s_lshl_b32 s49, s{J}, 11
s_add_u32 s49, s49, s48
s_lshl_b32 s43, s{G}, 8
s_lshl2_add_u32 s43, s{J}, s43
s_add_u32 s43, s43, {FLG + F_H1}
s_lshr_b32 s44, s{RH}, 1
s_lshl_b32 s44, s44, 8
s_add_u32 s44, s44, {FLG + F_H1}""")
    atomic(tload("t1b", vKA0))
    for r_ in (CF+1, CF+3, CF+4, CF+5): F.add(f"v_mov_b32 v{r_}, 0")
    def orow(dst, g5, second):
        return f"""s_mul_i32 s66, s{g5}, 205
s_lshr_b32 s66, s66, 10
s_mul_i32 s67, s66, 5
s_sub_u32 s67, s{g5}, s67
s_lshl_b32 s{dst}, s67, 3
s_cmp_gt_u32 s67, 2
s_cselect_b32 s69, 4, 0
s_sub_u32 s{dst}, s{dst}, s69
s_cmp_eq_u32 s67, 2
s_cselect_b32 s69, 20, 4
s_mul_i32 s69, s69, {second}
s_add_u32 s{dst}, s{dst}, s69
s_mul_i32 s66, s66, 40
s_add_u32 s{dst}, s{dst}, s66
s_mul_i32 s{dst}, s{dst}, 1280"""
    def b2issue(prog):
        prog.emit(f"""s_mul_i32 s59, s{C}, 160
s_mov_b32 s{sB2}, s10
s_and_b32 s{sB2+1}, s11, 0xffff
s_mov_b32 s{sB2+2}, 640*1280
s_mov_b32 s{sB2+3}, 0x20000
s_add_u32 s65, s{RH}, 64
s_and_b32 s57, s{W}, 1
{orow(68, 65, 's57')}
s_add_u32 s68, s68, s59
s_cmp_lt_u32 s{RH}, 16
s_cselect_b32 s56, s{W}, 9
s_cmp_lt_u32 s56, 2
s_cselect_b64 s[66:67], -1, 0
s_lshl_b32 s56, s56, 10
s_add_u32 s56, s56, {L_EX}
v_mov_b32 v{TM+1}, {BIG}
s_cmp_lg_u64 s[66:67], 0
s_cselect_b32 m0, s56, {L_DUM}
v_cndmask_b32 v{TM+1}, v{TM+1}, v{C1A+3}, s[66:67]
v_cndmask_b32 v{C1C+3}, v{TM+1}, v{C1C+3}, s[66:67]""".replace(f"v_cndmask_b32 v{C1C+3}, v{TM+1}, v{C1C+3}, s[66:67]", ""))
        prog.emit(f"buffer_load_dwordx4 v{TM+1}, s[{sB2}:{sB2+3}], s68 offen{LDP} lds", tok="SB2")
        prog.emit(f"""s_lshl_b32 s65, s{W}, 12
s_add_u32 m0, s65, {L_B2}
s_lshr_b32 s56, s{W}, 1
s_lshl1_add_u32 s56, s{RH}, s56
s_cmp_ge_u32 s{RH}, 24
s_cbranch_scc1 M_b2o
s_mov_b32 s{sB2}, s16
s_and_b32 s{sB2+1}, s17, 0xffff
s_mov_b32 s{sB2+2}, 1536*1280
s_lshl3_add_u32 s56, s56, s57
s_mul_i32 s68, s56, 4*1280
s_add_u32 s68, s68, s59""")
        for mm in range(4):
            if mm: prog.emit(f"s_add_u32 s68, s68, {8*1280 - 1024}")
            prog.emit(f"buffer_load_dwordx4 v{C1A+3}, s[{sB2}:{sB2+3}], s68 offen offset:{1024*mm}{LDP} lds", tok="SB2")
        prog.raw("M_b2o_back:")
    gate_on("STGFREE")
    F.act(b2issue)
    sync_local("SB2", ["SB2"], O("d_sb2", 1000))
    F.add(f"""s_and_b32 s56, s{RH}, 7
s_and_b32 s57, s{C}, 3
s_lshl1_add_u32 s56, s57, s56
s_and_b32 s56, s56, 7
s_lshl_b32 s88, s56, 10
s_lshl_b32 s90, s56, 13
s_and_b32 s89, s88, 0xc00
s_and_b32 s91, s90, 0x6000
s_mul_i32 s56, s{RH}, {4*AFRT}
s_add_u32 s56, s56, {AF}
s_mul_i32 s57, s{C}, {B2C}
s_add_u32 s46, s57, {B2F}
s_lshl_b32 s58, s{W}, 13
s_add_u32 s92, s56, s58
s_lshl_b32 s58, s{W}, 12
s_add_u32 s93, s56, s58
s_add_u32 s93, s93, {32*1024}
s_mul_i32 s58, s{W}, 5120
s_add_u32 s94, s56, s58
s_add_u32 s94, s94, {48*1024}
s_lshl_b32 s58, s{W}, 16
s_add_u32 s95, s46, s58
s_lshl_b32 s58, s{W}, 15
s_add_u32 s96, s46, s58
s_add_u32 s96, s96, {32*B2K}
s_mul_i32 s58, s{W}, {5*B2K}
s_add_u32 s97, s46, s58
s_add_u32 s97, s97, {48*B2K}""")
    F.add(f"buffer_load_dwordx4 v[{MF}:{MF+3}], v{C1A}, {WSR}, s47 offen sc1")
    gate_on("SB2")
    D2 = PP
    for t in range(3): F.add(f"ds_read_b64_tr_b16 v[{D2+4*t}:{D2+4*t+1}], v{C1C} offset:{8*t}\nds_read_b64_tr_b16 v[{D2+4*t+2}:{D2+4*t+3}], v{C1C} offset:{8*t+1024}")
    F.add(f"ds_read_b64_tr_b16 v[{D2+12}:{D2+13}], v{C1C+2}\nds_read_b64_tr_b16 v[{D2+14}:{D2+15}], v{C1C+2} offset:1024")
    F.add(f"""s_lshl_b32 s56, s{RH}, 14
s_add_u32 s56, s56, s46
s_lshr_b32 s57, s{RH}, 2
s_lshl_b32 s57, s57, 13
s_and_b32 s58, s{RH}, 3
s_lshl_b32 s58, s58, 8
s_add_u32 s57, s57, s58
s_add_u32 s57, s57, s46
s_add_u32 s57, s57, {64*B2K}
s_cmp_lt_u32 s{RH}, 16
s_cselect_b64 s[66:67], -1, 0
v_mov_b32 v{TM+1}, {BIG}
v_cndmask_b32 v{TM+1}, v{TM+1}, v{C1C+3}, s[66:67]""")
    for t in range(3): F.add(f"buffer_store_dwordx4 v[{D2+4*t}:{D2+4*t+3}], v{C1C+1}, {WSR}, s56 offen offset:{1024*t} sc1", tok="PUBB")
    F.add(f"buffer_store_dwordx4 v[{D2+12}:{D2+15}], v{TM+1}, {WSR}, s57 offen sc1", tok="PUBB")
    publish("s0b", "PUBB", f"s_lshl_b32 s14, s{C}, 8\ns_lshl2_add_u32 s14, s{RH}, s14\ns_add_u32 s14, s14, {FLG + F_S0B}", O("d_pubb", 900),
            (O("d_vis", 1300), poll("s0b", f"s_lshl_b32 s9, s{C}, 8\ns_add_u32 s9, s9, {FLG + F_S0B}", O("d_poll", 500), "S0b", TM + 4, vFP32, 9)))
    gate_on("S0")
    CG = PP
    F.add(f"s_mul_i32 s56, s{J}, 16*1280\ns_add_u32 s45, s56, {CSP}")
    for g2 in range(16):
        F.add(f"buffer_load_dwordx2 v[{CG+2*g2}:{CG+2*g2+1}], v{C1A+1}, {WSR}, s45 offen offset:{(g2 % 3) * 1280} sc1")
        if g2 % 3 == 2: F.add("s_add_u32 s45, s45, 3840")
    F.act(lambda prog: check("st", f"buffer_load_dwordx4 v[{MF}:{MF+3}], v{C1A}, {WSR}, s47 offen sc1", f"v_cmp_ne_u32 s[100:101], s{TAG}, v{MF+3}"))
    F.add(f"""s_mov_b32 s66, -1
s_mov_b32 s67, 0
v_mov_b32 v{vRS}, v{MF+1}
v_mov_b32 v{vS2}, v{MF+2}
v_mul_f32 v{vCP}, {LOG2E}, v{MF+1}
v_mul_f32 v{vCE}, {NLOG2E}, v{MF+1}
v_cndmask_b32 v{MF}, 0, v{MF}, s[66:67]
v_mov_b32 v{MF+1}, 0
v_mov_b32 v{MF+2}, 0
v_mov_b32 v{MF+3}, 0""")
    gate_time(O("d_cs", 500))
    for g2 in range(1, 16): F.add(f"v_add_f32 v{CG}, v{CG}, v{CG+2*g2}\nv_add_f32 v{CG+1}, v{CG+1}, v{CG+2*g2+1}")
    F.add(f"""v_cvt_pk_bf16_f32 v{CG+2}, v{CG}, v{CG+1}
v_lshlrev_b32 v{CG+3}, 16, v{CG+2}
v_and_b32 v{CG+4}, 0xffff0000, v{CG+2}
v_sub_f32 v{CG}, v{CG}, v{CG+3}
v_sub_f32 v{CG+1}, v{CG+1}, v{CG+4}
v_cvt_pk_bf16_f32 v{CG}, v{CG}, v{CG+1}
v_and_b32 v{CG+1}, 0xffff0000, v{CG}
v_lshrrev_b32 v{CG+4}, 16, v{CG+4}
v_or_b32 v{CG+1}, v{CG+1}, v{CG+4}
v_and_b32 v{CG+2}, 0xffff, v{CG+2}
v_lshl_or_b32 v{CG}, v{CG}, 16, v{CG+2}""")
    F.add(f"ds_write_b64 v{C1A+2}, v[{CG}:{CG+1}]", tok="CS")
    sync_local("CS", ["CS", "WP"], 0, O("csurg", True)); gate_on("CS")
    cfi = [0]
    def foldseq(items):
        it = []
        for tile, acc in items:
            b = CF + 2*(cfi[0] & 1); cfi[0] += 1
            it.append((f"ds_read_b32 v{b}, v{vCSR} offset:{L_CS + tile*128}", f"v_mfma_f32_32x32x16_bf16 v[{acc}:{acc+15}], v[{b}:{b+3}], v[{MF}:{MF+3}], v[{acc}:{acc+15}]"))
        F.add(it[0][0])
        for k in range(len(it)):
            if k + 1 < len(it): F.add(it[k+1][0])
            F.add(it[k][1])
    foldseq([(0, AC1), (2, AC1 + 32), (1, AC1 + 16), (3, AC1 + 48)])
    gate_pos(pos_c1 + 3 - PD)
    for nm, reg in (("t2b", vAFo), ("t2d", vA1), ("t2c", vWP0), ("t2a", vG0)): atomic(tload(nm, reg))
    gate_pos(pos_c1 + 3)
    foldseq([(4 + tl, AC2 + 16*tl) for tl in range(3)])
    F.add(f"""s_lshl_b32 s56, s{J}, 10
s_add_u32 s56, s56, s48
s_add_u32 s53, s56, 32768
s_mul_i32 s56, s{J}, 1280
s_add_u32 s56, s56, s48
s_add_u32 s54, s56, 49152""")
    for u in range(2): F.add(f"buffer_store_dwordx4 v[{SN}:{SN+3}], v{vAFh}, {WSR}, s53 offen offset:{256*u} sc1")
    F.add(f"buffer_store_dwordx4 v[{SN}:{SN+3}], v{vAFo}, {WSR}, s54 offen sc1\nbuffer_store_dwordx4 v[{SN}:{SN+3}], v{vAFo}, {WSR}, s54 offen offset:256 sc1\nbuffer_store_dwordx2 v[{SN}:{SN+1}], v{vAFo2}, {WSR}, s54 offen offset:512 sc1")
    HO = TT + 4
    for tt in range(2):
        silu_fill(F, AC1 + 16*tt, AC1 + 32 + 16*tt, TM, HO + 8*tt, vCE, vS2)
        for u in range(2): F.add(f"buffer_store_dwordx4 v[{HO+8*tt+4*u}:{HO+8*tt+4*u+3}], v{vAFh}, {WSR}, s49 offen offset:{1024*tt + 256*u} sc1", tok="H1")
    mark("h1 stored"); setg('F3')
    publish("h1", "H1", "s_mov_b32 s14, s43", O("d_pub", 1300), (O("d_vis1", 1800), poll("h1", "s_mov_b32 s15, s44", O("d_poll1", 900), "h1", vPL, vFP, 15)))
    KS = [('h1', e) for e in range(8)] + [('h2', e) for e in range(4)] + [('o', e) for e in range(5)]
    regsA = {}; regsB = {}; arrive = {}
    def rng(r): return f"{r[0]}[{int(r[1:])}:{int(r[1:])+3}]"
    def ks_setup(i, which):
        kind, e = KS[i]; k = ['h1', 'h2', 'o'].index(kind)
        dst, rot, base, sh = (6, 88 if k == 0 else 89, 92 + k, 10) if which == 'A' else (7, 90 if k == 0 else 91, 95 + k, 13)
        if kind == 'o' and e == 4: return f"s_add_u32 s{dst}, s{base}, {4 << sh}\n"
        return (f"s_xor_b32 s12, s{rot}, {e << sh}\ns_add_u32 s{dst}, s12, s{base}\n" if e else f"s_add_u32 s{dst}, s{rot}, s{base}\n")
    def a_load(i, k, r): return f"buffer_load_dwordx4 {rng(r)}, v{[vL16, vA1, vA2, vA3][k]}, {WSR}, s6 offen sc1"
    def ld_text(i, which, k, r):
        if which == 'A': return (ks_setup(i, 'A') if k == 0 else "") + a_load(i, k, r)
        return (ks_setup(i, 'B') if k == 0 else "") + f"buffer_load_dwordx4 {rng(r)}, v{vL16 if k < 4 else vB4}, {WSR}, s7 offen offset:{1024*(k % 4)} sc1"
    Bq = deque((i, 'B', k) for i in range(17) for k in range(5))
    Aq = deque((i, 'A', k) for i in range(17) for k in range(4))
    def p2_pick(phase2):
        if Aq and gates.get(KS[Aq[0][0]][0]) and (not Bq or Bq[0][0] > Aq[0][0] or Aq[0][2] > 0):
            pl = pool if Aq[0][0] < 8 else vpool
            if pl and (Aq[0][2] > 0 or len(pl) >= 4 or not phase2): return Aq
        if Bq and gates.get('S0b') and gates.get('T2') and pool:
            reserve = O("reserve", 4) if (phase2 and Aq and Aq[0][0] < 8 and Bq[0][0] > Aq[0][0]) else 0
            if not phase2 or len(pool) > reserve: return Bq
        return None
    def p2_issue(q):
        i, which, k = q.popleft(); r = (vpool if (which == 'A' and i >= 8) else pool).popleft(); (regsA if which == 'A' else regsB)[(i, k)] = r
        p.emit(ld_text(i, which, k, r)); tick(); arrive[(i, which, k)] = ta['free'] + O("lat", 700)
    F.q.insert([k for k, x in enumerate(F.q) if isinstance(x, I) and 's53 offen' in x.text][0], lambda prog: gates.__setitem__('T2', True))
    gate_pos(pos_kv + 1)
    F.act(lambda prog: st.__setitem__('urg', O('urg', 3)))
    BQ = TT
    wb = [PHQ, PHQ+4, PHQ+8, PHQ+12, PHQ+16, TT+12]
    def wphi(src, dstP):
        for s in range(3):
            for tp in range(2):
                b = wb[3*tp + s]
                F.add(f"ds_read_b64_tr_b16 v[{b}:{b+1}], v{vWP0+tp} offset:{320*s}")
                if s < 2: F.add(f"ds_read_b64_tr_b16 v[{b+2}:{b+3}], v{vWP0+tp} offset:{320*s+160}")
        for i in range(10): F.add(f"v_cvt_pk_bf16_f32 v{BQ+i}, v{src+2*i}, v{src+2*i+1}")
        F.add(f"v_mov_b32 v{BQ+10}, 0\nv_mov_b32 v{BQ+11}, 0\nv_mov_b32 v{wb[2]+2}, 0\nv_mov_b32 v{wb[2]+3}, 0\nv_mov_b32 v{wb[5]+2}, 0\nv_mov_b32 v{wb[5]+3}, 0")
        for s in range(3):
            for tp in range(2):
                d = f"v[{dstP+16*tp}:{dstP+16*tp+15}]"; b = wb[3*tp + s]
                F.add(f"v_mfma_f32_32x32x16_bf16 {d}, v[{b}:{b+3}], v[{BQ+4*s}:{BQ+4*s+3}], {'0' if s == 0 else d}")
    wphi(AC2, PP)
    VV = AC2
    for i in range(10): F.add(f"v_mul_f32 v{AC2+20+2*i}, v{AC2+20+2*i}, v{vRS}\nv_mul_f32 v{AC2+21+2*i}, v{AC2+21+2*i}, v{vRS}\nv_cvt_pk_bf16_f32 v{VV+i}, v{AC2+20+2*i}, v{AC2+21+2*i}")
    F.add(f"v_mov_b32 v{VV+10}, 0x3f80\nv_mov_b32 v{VV+11}, 0")
    for e in range(3): F.add(f"v_xor_b32 v{TM+6+(e&1)}, {(9+e)<<4}, v{vW0}\nds_write_b128 v{TM+6+(e&1)}, v[{VV+4*e}:{VV+4*e+3}]", tok="PH")
    PK = AC2 + 12
    softmax_fill(F, PP, TT, False, PK, None, TM, vCP, vCE)
    for e in range(5): F.add(f"v_xor_b32 v{TM+6+(e&1)}, {(e if e < 4 else 8)<<4}, v{vW0}\nds_write_b128 v{TM+6+(e&1)}, v[{PK+4*e}:{PK+4*e+3}]", tok="PH")
    mark("PH written")
    sync_local("PH", ["PH"], 60, True)
    foldseq([(7, AC2 + 48)])
    gate_pos(pos_q + 2)
    foldseq([(8, AC1), (9, AC1 + 16)])
    wphi(AC2 + 40, PP)
    gate_on("PH")
    KD = AC2
    def kvread(ks):
        b = AC2 + 16 + 8*(ks % 4)
        return (f"ds_read_b64_tr_b16 v[{b}:{b+1}], v{vKA0} offset:{ks*4096}\nds_read_b64_tr_b16 v[{b+2}:{b+3}], v{vKA1} offset:{ks*4096}\n"
                f"ds_read_b64_tr_b16 v[{b+4}:{b+5}], v{vKB0} offset:{ks*4096}\nds_read_b64_tr_b16 v[{b+6}:{b+7}], v{vKB1} offset:{ks*4096}")
    for ks in range(2): F.add(kvread(ks))
    for ks in range(8):
        b = AC2 + 16 + 8*(ks % 4)
        if ks + 2 < 8: F.add(kvread(ks + 2))
        F.add(f"v_mfma_f32_32x32x16_bf16 v[{KD}:{KD+15}], v[{b}:{b+3}], v[{b+4}:{b+7}], {'0' if ks == 0 else f'v[{KD}:{KD+15}]'}")
    Fq = Filler(); softmax_fill(Fq, PP, TT, True, PHQ, VS1, TM, vCP, vCE)
    for _ in range(14): F.q.append(Fq.q.popleft())
    for i in range(8): F.add(f"v_cvt_pk_bf16_f32 v{KD+16+i}, v{KD+2*i}, v{KD+2*i+1}")
    F.add(f"buffer_store_dwordx4 v[{KD+16}:{KD+19}], v{vKP}, {WSR}, s51 offen sc1\nbuffer_store_dwordx4 v[{KD+20}:{KD+23}], v{vKP}, {WSR}, s51 offen offset:672 sc1\nbuffer_store_dwordx2 v[{KD+16}:{KD+17}], v{vKP2}, {WSR}, s51 offen offset:1344 sc1")
    mark("kv published")
    F.act(lambda prog: st.__setitem__('urg', O('urg2', 1)))
    setg('KVgo', O("d_kv", 1100))
    GB = [AC1 + 32 + 4*k for k in range(16)]
    def gl(g2): return f"buffer_load_dwordx4 v[{GB[g2]}:{GB[g2]+3}], v{vGS0}, {WSR}, s13 offen sc1"
    gtxt = "s_mov_b32 s13, s50\n" + "\n".join((f"s_add_u32 s13, s13, {KVS}\n" if g2 else "") + gl(g2) for g2 in range(16))
    gchk = f"v_max_u32 v{vCHK}, v{GB[0]}, v{GB[0]+2}\n" + "\n".join(f"v_max3_u32 v{vCHK}, v{vCHK}, v{GB[g2]}, v{GB[g2]+2}" for g2 in range(1, 16)) + f"\nv_cmp_eq_u32 s[100:101], -1, v{vCHK}"
    nq = O("nq", 150)
    for _ in range(min(nq, len(Fq.q))): F.q.append(Fq.q.popleft())
    gate_on('KVgo')
    F.add("s_mov_b32 s52, s50")
    for g2 in range(16): F.add((f"s_add_u32 s52, s52, {KVS}\n" if g2 else "") + gl(g2).replace("s13 offen", "s52 offen"))
    while Fq.q: F.q.append(Fq.q.popleft())
    mark("q softmax done")
    F.add("s_mov_b32 s10, 0x3f80\ns_mov_b32 s11, 0x3f800000")
    Fg = Filler(); svF = F.q; F.q = Fg.q
    GA = TT
    gate_time(O("d_g", 0))
    F.act(lambda prog: check("kv", gtxt, gchk))
    for g2 in range(16):
        for e in range(4):
            F.add(f"v_dot2_f32_bf16 v{GA+2*e}, v{GB[g2]+e}, s10, {'0' if g2 == 0 else f'v{GA+2*e}'}\nv_dot2_f32_bf16 v{GA+2*e+1}, v{GB[g2]+e}, s11, {'0' if g2 == 0 else f'v{GA+2*e+1}'}")
    setg('ACCfree')
    for e in range(4): F.add(f"v_cvt_pk_bf16_f32 v{GA+8+e}, v{GA+2*e}, v{GA+2*e+1}")
    F.add(f"ds_write_b128 v{vG0}, v[{GA+8}:{GA+11}]", tok="KF")
    sync_local("KF", ["KF"], 40, True)
    gather_part = F.q; F.q = svF
    bar(0)
    for e in range(4): xread(0, e)
    for i in range(PD): bread(i)
    ST("bar0")
    st['now'] = 0; st['k'] = len(p.out); st['mfree'] = 0; ta['free'] = O("ta0", 600)
    CAP = O("cap", 6.5)
    def try_vmem(i):
        if ta['free'] - tick() > O("taq", 200): return False
        if vq_ready(): vq_issue(); return True
        if i >= 160 and ta['free'] - tick() <= O("taq2", 60):
            q = p2_pick(False)
            if q: p2_issue(q); return True
        return False
    for i in range(NM):
        x = seq[i]; b = BA + 4*(i % NB)
        if i == pos_q: assert gates.get('F3'), "C1 epilogue late"
        if i % WG == 0: j2 = min(i + WG - 1, NM - 1); p.wait_regs(regs_of(f"a[{BA+4*(j2 % NB)}:{BA+4*(j2 % NB)+3}]"))
        acc = x['acc']; s = x['s']
        p.emit(f"v_mfma_f32_32x32x16_bf16 v[{acc}:{acc+15}], a[{b}:{b+3}], a[{XA+4*s}:{XA+4*s+3}], {'0' if x['first'] else f'v[{acc}:{acc+15}]'}")
        k0 = len(p.out); st['pos'] = i + 1
        if i + 1 in (32, 64, 96, 128, 160, 220, pos_kv, 320, 360): ST(f"m{i+1}")
        cap = (O('cap0', 12) if i < 32 else O('cap1', 9) if i < 160 else CAP + st.get('urg', 0)) - 1.0/WG + st.get('carry', 0)
        if i + PD < NM:
            if seq[i + PD]['sf']: bar(seq[i + PD]['t']); cap -= O("barslack", 1)
            bread(i + PD)
        if any(e['urgent'] for e in due()): bar("x")
        run_timed()
        if i < 160:
            m = i // 16; f = i % 16
            if m + 1 < 10 and 8 <= f < 12:
                if f == 8: flush_vq(f"X{m+1}")
                xread(m + 1, f - 8)
        if i >= NM - 80 and i % 2 == 1 and s >= 1: pool.append(f"a{XA+4*(s-1)}")
        kk = [k0]; nv = 0
        while True:
            if nv < (2 if i < 160 else 1) and try_vmem(i): nv += 1; continue
            if not step_filler(kk, cap): break
        st['carry'] = max(-3, min(2, cap - p.cost_since(kk[0])))
    assert not vq
    pool.append(f"a{XA+156}")
    for k in range(NB): pool.append(f"a{BA+4*k}")
    log(f"phase1 end t={tick():.0f}: filler left cost {F.cost()}; A left {len(Aq)} B left {len(Bq)} pool {len(pool)}; nops {p.stats['nop']}")
    ST("m400")
    st['pos'] = 1000
    rest = deque(F.q); F.q = deque()
    HO2 = SP
    silu_fill(F, AC1, AC1 + 16, CF, HO2, vCE, vS2)
    for u in range(2): F.add(f"buffer_store_dwordx4 v[{HO2+4*u}:{HO2+4*u+3}], v{vAFh}, {WSR}, s53 offen offset:{256*u} sc1")
    mark("h2 stored"); setg('h2', O("d_h2", 1500))
    h2part = F.q
    F.q = deque()
    if O("h2first", 0): F.q.extend(rest); F.q.extend(h2part); F.q.extend(gather_part)
    else: F.q.extend(rest); F.q.extend(gather_part); F.q.extend(h2part)
    gate_on("KF")
    OD = PP
    kb = lambda k: AC1 + 4*k if k < 8 else SP + 8 + 4*(k - 8)
    for s in range(5):
        for tp in (1, 0): k = 2*s + tp; F.add(f"ds_read_b128 v[{kb(k)}:{kb(k)+3}], v{vKF1 if tp else vKF0} offset:{16*s}")
    for s in range(5):
        for tp in (1, 0):
            k = 2*s + tp; d = f"v[{OD+16*tp}:{OD+16*tp+15}]"
            F.add(f"v_mfma_f32_32x32x16_bf16 {d}, v[{kb(k)}:{kb(k)+3}], v[{PHQ+4*s}:{PHQ+4*s+3}], {'0' if s == 0 else d}")
    F.act(lambda prog: [vpool.append(f"v{r}") for r in ([AC1 + 4*k for k in range(8)] + [SP + 4*k for k in range(4)])])
    F.add(f"v_add_f32 v{TM}, v{OD+20}, v{VS1}\nv_rcp_f32 v{TM}, v{TM}")
    for i in range(10): F.add(f"v_mul_f32 v{OD+2*i}, v{OD+2*i}, v{TM}\nv_mul_f32 v{OD+2*i+1}, v{OD+2*i+1}, v{TM}\nv_cvt_pk_bf16_f32 v{PHQ+i}, v{OD+2*i}, v{OD+2*i+1}")
    F.add(f"buffer_store_dwordx4 v[{PHQ}:{PHQ+3}], v{vAFo}, {WSR}, s54 offen sc1\nbuffer_store_dwordx4 v[{PHQ+4}:{PHQ+7}], v{vAFo}, {WSR}, s54 offen offset:256 sc1\nbuffer_store_dwordx2 v[{PHQ+8}:{PHQ+9}], v{vAFo2}, {WSR}, s54 offen offset:512 sc1")
    mark("o stored"); setg('o', O("d_o", 1500))
    F.act(lambda prog: [vpool.append(f"v{r}") for r in [PP + 4*k for k in range(8)]])
    XR = TT
    F.add(f"""s_mov_b32 s{sW}, s18
s_and_b32 s{sW+1}, s19, 0xffff
s_mov_b32 s{sW+2}, 2048*1280
s_lshl2_add_u32 s46, s{RH}, s{W}
s_mul_i32 s46, s46, 16*1280
s_mul_i32 s56, s{C}, 160
s_add_u32 s46, s46, s56
buffer_load_dwordx4 v[{XR}:{XR+3}], v{vOUT}, s[{sX}:{sX+3}], s46 offen
buffer_load_dwordx4 v[{XR+4}:{XR+7}], v{vOUT}, s[{sX}:{sX+3}], s46 offen offset:16
buffer_load_dwordx2 v[{XR+8}:{XR+9}], v{vOUT}, s[{sX}:{sX+3}], s46 offen offset:32""")
    mq = deque((i, rt, t) for i in range(17) for rt in range(4) for t in range(5))
    def m_ready_time():
        i, rt, t = mq[0]
        if not gates.get('ACCfree') or (i, t) not in regsB: return None
        need = [rt] if i < 8 else range(4)
        if any((i, k) not in regsA for k in need): return None
        return max([arrive[(i, 'A', k)] for k in need] + [arrive[(i, 'B', t)]])
    def m_emit():
        i, rt, t = mq.popleft()
        if rt == 0 and t == 0:
            if i in (0, 2, 4, 6, 8, 10, 12, 14): ST(f"k{i}")
            log(f"  k{i} at t={tick():.0f}")
            if i >= 8:
                r = [int(regsA[(i, k)][1:]) for k in range(4)]
                if i < 12: ck = f"v_max_u32 v{vCHK}, v{r[0]}, v{r[1]}\nv_max3_u32 v{vCHK}, v{vCHK}, v{r[2]}, v{r[3]}"
                else: ck = f"v_max_u32 v{vCHK}, v{r[0]}, v{r[0]+2}\n" + "\n".join(f"v_max3_u32 v{vCHK}, v{vCHK}, v{r[k]}, v{r[k]+2}" for k in range(1, 4))
                rl = ks_setup(i, 'A').replace("s6,", "s13,") + "\n".join(a_load(i, k, regsA[(i, k)]).replace("s6 offen", "s13 offen") for k in range(4))
                check(f"a{i}", rl, ck + f"\nv_cmp_eq_u32 s[100:101], -1, v{vCHK}")
        d = f"v[{ACC+20*rt+4*t}:{ACC+20*rt+4*t+3}]"
        p.emit(f"v_mfma_f32_16x16x32_bf16 {d}, {rng(regsB[(i,t)])}, {rng(regsA[(i,rt)])}, {'0' if i == 0 else d}")
        if t == 4: (pool if regsA[(i, rt)][0] == 'a' else vpool).append(regsA[(i, rt)])
        if rt == 3: pool.append(regsB[(i, t)])
    nf = 0
    while mq:
        now = tick()
        if due(): bar("x"); continue
        run_timed()
        q = p2_pick(True)
        if q and ta['free'] - now <= O("taq3", 200): p2_issue(q); continue
        mr = m_ready_time()
        mok = mr is not None and mr <= now
        if mok and nf >= O("fpm", 4): m_emit(); nf = 0; continue
        k0 = [len(p.out)]
        if step_filler(k0, 100): nf += 1; continue
        if mok: m_emit(); nf = 0; continue
        cand = []
        if mr is not None: cand.append(mr)
        if q: cand.append(ta['free'] - O("taq3", 200))
        cand += [e['t'] for e in events] + [x[0] for x in timed]
        if F.q and isinstance(F.q[0], list) and len(F.q[0]) > 2:
            t = now
            while not F.q[0][1](): st['now'] += 20
            cand.append(st['now']); st['now'] = t
        if F.q and isinstance(F.q[0], I): x = F.q.popleft(); p.emit(x); glue(x); continue
        assert cand, "phase-2 deadlock"
        st['now'] = max(now, min(cand))
    while F.q or events:
        if events: bar("x", True); continue
        x = F.q.popleft()
        if isinstance(x, list): continue
        if callable(x): x(p)
        else: p.emit(x)
    log(f"phase2 end t={tick():.0f}")
    ST("k17")
    RED = RING
    XU = PP
    for d in range(10): p.emit(f"v_lshlrev_b32 v{XU+2*d}, 16, v{XR+d}\nv_and_b32 v{XU+2*d+1}, 0xffff0000, v{XR+d}")
    p.emit(f"s_mul_i32 s56, s{W}, 15360\ns_add_u32 s56, s56, {RED}\nv_add_u32 v{TM+5}, s56, v{vL16}")
    sn = p.snapshot()
    for w in range(4):
        p.emit(f"s_cmp_lg_u32 s{W}, {w}\ns_cbranch_scc1 M_w{w}")
        for k in range(1, 4):
            rt = (w + k) & 3
            for t in range(5):
                d = ACC + 20*rt + 4*t; off = RED + (rt*3 + k - 1)*5120 + t*1024
                p.emit(f"ds_write_b128 v{vL16 if off < 65536 else vL16b}, v[{d}:{d+3}] offset:{off & 0xffff}")
        for r in range(0, 20, 2): p.emit(f"v_pk_add_f32 v[{XU+r}:{XU+r+1}], v[{ACC+20*w+r}:{ACC+20*w+r+1}], v[{XU+r}:{XU+r+1}]")
        p.emit("s_waitcnt lgkmcnt(0)")
        p.raw(f"M_w{w}:")
        p.restore(sn)
    p.emit("s_barrier")
    ST("redbar")
    RDB = ACC
    for k in range(3):
        for t in range(5): b = RDB + 20*k + 4*t; p.emit(f"ds_read_b128 v[{b}:{b+3}], v{TM+5} offset:{k*5120 + t*1024}")
    for k in range(3):
        for r in range(0, 20, 2): p.emit(f"v_pk_add_f32 v[{XU+r}:{XU+r+1}], v[{XU+r}:{XU+r+1}], v[{RDB+20*k+r}:{RDB+20*k+r+1}]")
    for d in range(10): p.emit(f"v_cvt_pk_bf16_f32 v{XR+d}, v{XU+2*d}, v{XU+2*d+1}")
    OS = O("outsc", "")
    p.emit(f"buffer_store_dwordx4 v[{XR}:{XR+3}], v{vOUT}, s[{sW}:{sW+3}], s46 offen{OS}\nbuffer_store_dwordx4 v[{XR+4}:{XR+7}], v{vOUT}, s[{sW}:{sW+3}], s46 offen offset:16{OS}\nbuffer_store_dwordx2 v[{XR+8}:{XR+9}], v{vOUT}, s[{sW}:{sW+3}], s46 offen offset:32{OS}")
    ST("end"); ST.flush(sWS, AC1)
    p.emit(f"s_cmp_lg_u32 s2, 0\ns_cbranch_scc1 M_end\ns_mov_b32 s56, {EPOCH}\nbuffer_store_dword v{vTAG}, v{vFS}, {WSR}, s56 offen")
    p.raw("M_end:")
    p.emit("s_endpgm")
    for nm, ld, cmpi in slow:
        q = Prog()
        q.raw(f"M_slow_{nm}:"); q.emit("s_mov_b32 s8, 0"); q.raw(f"M_spin_{nm}:")
        q.emit(ld); q.emit("s_waitcnt vmcnt(0)"); q.emit(cmpi); q.emit(f"s_add_u32 s8, s8, 1\ns_cmp_eq_u64 s[100:101], 0\ns_cbranch_scc1 M_back_{nm}")
        q.emit(f"s_cmp_lt_u32 s8, 0x4000\ns_cbranch_scc1 M_spin_{nm}\ns_branch M_back_{nm}")
        p.out += q.out
    q = Prog(); q.raw("M_b2o:")
    q.emit("s_sub_u32 s56, s56, 48\ns_lshl1_add_u32 s56, s56, s57\ns_lshl_b32 s56, s56, 1")
    for mm in range(4):
        q.emit(f"s_add_u32 s65, s56, {mm >> 1}\n{orow(68, 65, mm & 1)}\ns_add_u32 s68, s68, s59" + (f"\ns_sub_u32 s68, s68, {1024*mm}" if mm else ""))
        q.emit(f"buffer_load_dwordx4 v{C1A+3}, s[{sB2}:{sB2+3}], s68 offen offset:{1024*mm}{LDP} lds")
    q.emit("s_branch M_b2o_back")
    q.raw("M_codeend:")
    p.out += q.out
    log(f"main: instrs {len(p.out)} nops {p.stats['nop']}")
    tb = ".p2align 8\n.type M_tbl,@object\nM_tbl:\n" + "\n".join(".long " + ", ".join(hex(v) for v in tdata[k:k+16]) for k in range(0, len(tdata), 16)) + f"\n.size M_tbl, {4*len(tdata)}\n"
    return name, p.text() + tb, kd(name, 512, 256), (256, 256, LDS_N)

HEAD = open("cdna_kernels/" + NAME + ".s.ref").read().split("; Override launch")[0]
def build(opt={}):
    name, txt, k, (g, b, lds) = gen_main(opt)
    return HEAD + f"; @launch grid=({g},1,1) block=({b},1,1) lds={lds}\n" + '.amdgcn_target "amdgcn-amd-amdhsa--gfx950"\n.text\n' + txt + '.section .rodata,"a"\n.p2align 6\n' + k
if __name__ == "__main__":
    out = sys.argv[1]
    opt = eval(sys.argv[2]) if len(sys.argv) > 2 else {}
    open(out, "w").write(build(opt))
```
